```python
import torch

def _softmax(x, axis=-1):
    return torch.softmax(x, dim=axis)
def _gelu(x):
    return torch.nn.functional.gelu(x, approximate="tanh")
def _silu(x):
    return torch.nn.functional.silu(x)
def _sigmoid(x):
    return torch.sigmoid(x)
def _layernorm(x, axis=-1, eps=1e-5):
    m = x.mean(dim=axis, keepdim=True)
    v = x.var(dim=axis, keepdim=True, unbiased=False)
    return (x - m) / torch.sqrt(v + eps)
def _scatter_add(tgt, idx, src, axis=0):
    return tgt.clone().index_add_(axis, idx, src)
def _segment_sum(src, seg, n):
    out = torch.zeros((n,) + src.shape[1:], dtype=src.dtype)
    return out.index_add_(0, seg, src)
def _pad(x, pw):
    flat = tuple(v for pair in reversed(pw) for v in pair)
    return torch.nn.functional.pad(x, flat)

kernel_name = 'standalone__gqa_block_cached__near_ridge'

def setup_inputs():

    _w = (lambda a: (lambda t: t.to(torch.bfloat16) if t.is_floating_point() else t)(torch.as_tensor(a)))
    B, Sq, D = 8, 96, 576
    Hq, Hkv, Sk, Dh = 32, 16, 512, 128
    assert Hq % Hkv == 0, (Hq, Hkv)
    return {
        "x": _w((lambda *s: torch.randn(*s, dtype=torch.bfloat16) * 0.8)(B, Sq, D)),
        "k_cache": _w((lambda *s: torch.randn(*s, dtype=torch.bfloat16) * 0.8)(B, Hkv, Sk, Dh)),
        "v_cache": _w((lambda *s: torch.randn(*s, dtype=torch.bfloat16) * 0.05)(B, Hkv, Sk, Dh)),
        "wq": _w((lambda *s: torch.randn(*s, dtype=torch.bfloat16) * 0.8)(D, Hq * Dh) * (D ** -0.5)),
        "wo": _w((lambda *s: torch.randn(*s, dtype=torch.bfloat16) * 0.05)(Hq * Dh, D) * ((Hq * Dh) ** -0.5)),
    }

def reference(x, k_cache, v_cache, wq, wo):
    B, Sq, D = x.shape
    Hq, Dh = 32, 128
    Hkv = k_cache.shape[1]
    rep = Hq // Hkv
    q = (lambda x, *d: x.permute(*d))((x @ wq).reshape(B, Sq, Hq, Dh), 0, 2, 1, 3)
    k = (lambda x, n, axis: torch.repeat_interleave(x, n, dim=axis))(k_cache, rep, axis=1)
    v = (lambda x, n, axis: torch.repeat_interleave(x, n, dim=axis))(v_cache, rep, axis=1)
    scores = torch.einsum("bhqd,bhkd->bhqk", q, k) * (Dh ** -0.5)
    p = _softmax(scores, axis=-1)
    o = torch.einsum("bhqk,bhkd->bhqd", p, v)
    return (lambda x, *d: x.permute(*d))(o, 0, 2, 1, 3).reshape(B, Sq, Hq * Dh) @ wo
```

```python
import re

TRANS = ("v_exp_f32", "v_log_f32", "v_rcp_f32", "v_rsq_f32", "v_sqrt_f32", "v_sin_f32", "v_cos_f32")
REG_RE = re.compile(r"\b([vas])\[(\d+):(\d+)\]|\b([vas])(\d+)\b|\b(vcc|exec|m0|scc)\b")


def regs_of(op):
    out = []
    for m in REG_RE.finditer(op):
        if m.group(1):
            out += [(m.group(1), i) for i in range(int(m.group(2)), int(m.group(3)) + 1)]
        elif m.group(4):
            out.append((m.group(4), int(m.group(5))))
        else:
            out.append((m.group(6), 0))
    return out


def split_ops(s):
    ops, depth, cur = [], 0, ""
    for ch in s:
        if ch == "[":
            depth += 1
        if ch == "]":
            depth -= 1
        if ch == "," and depth == 0:
            ops.append(cur.strip())
            cur = ""
        else:
            cur += ch
    if cur.strip():
        ops.append(cur.strip())
    return ops


class Ins:
    def __init__(self, text):
        self.text = text
        t = text.split(";")[0].strip()
        parts = t.split(None, 1)
        self.op = parts[0]
        rest = parts[1] if len(parts) > 1 else ""
        ops = split_ops(rest)
        self.ops = ops
        op = self.op
        self.kind = "other"
        self.wr, self.rd = [], []
        self.mA, self.mC = [], []
        self.passes = 0
        self.states = 1
        self.lds_dma = False
        self.wide = False
        if op.startswith("v_mfma"):
            self.kind = "mfma"
            self.wr = regs_of(ops[0])
            self.mA = regs_of(ops[1]) + regs_of(ops[2])
            self.mC = regs_of(ops[3])
            self.rd = self.mA + self.mC
            self.passes = 8 if "32x32x16" in op else 4
        elif op.startswith("v_"):
            self.kind = "valu"
            if op.startswith("v_permlane") and "swap" in op:
                self.wr = regs_of(ops[0]) + regs_of(ops[1])
                self.rd = list(self.wr)
            elif op.startswith("v_cmp"):
                self.wr = regs_of(ops[0])
                self.rd = sum((regs_of(o) for o in ops[1:]), [])
            elif op.startswith("v_nop"):
                pass
            else:
                self.wr = regs_of(ops[0])
                self.rd = sum((regs_of(o) for o in ops[1:]), [])
                if op.startswith("v_fmac") or op.startswith("v_mac") or op.startswith("v_pk_fmac"):
                    self.rd += self.wr
                if "_co_" in op:
                    self.wr += regs_of(ops[1])
                if op.startswith("v_cndmask") and len(ops) == 3:
                    self.rd.append(("vcc", 0))
        elif op.startswith("ds_"):
            self.kind = "ds"
            if "read" in op:
                self.wr = regs_of(ops[0])
                self.rd = regs_of(ops[1])
            else:
                self.rd = sum((regs_of(o) for o in ops), [])
        elif op.startswith("buffer_") or op.startswith("global_"):
            self.kind = "vmem"
            allr = [regs_of(o) for o in ops]
            if " lds" in (" " + rest) and "load" in op:
                self.lds_dma = True
                self.rd = sum(allr, []) + [("m0", 0)]
            elif "load" in op:
                self.wr = allr[0]
                self.rd = sum(allr[1:], [])
            elif "atomic" in op:
                self.rd = sum(allr, [])
                if " sc0" in rest:
                    self.wr = allr[0]
            else:
                self.rd = sum(allr, [])
                self.wide = ("x4" in op or "x3" in op)
                self.sdata = allr[0] if op.startswith("buffer_") else allr[1]
        elif op.startswith("s_load") or op.startswith("s_memtime") or op.startswith("s_memrealtime") or op.startswith("s_buffer_load"):
            self.kind = "smem"
            self.wr = regs_of(ops[0])
            self.rd = sum((regs_of(o) for o in ops[1:]), [])
        elif op == "s_nop":
            self.kind = "nop"
            self.states = int(ops[0], 0) + 1
        elif op == "s_waitcnt":
            self.kind = "wait"
        elif op.startswith("s_"):
            self.kind = "salu"
            if op.startswith(("s_cmp", "s_cbranch", "s_branch", "s_barrier", "s_endpgm", "s_setprio", "s_sleep", "s_bitcmp")):
                self.rd = sum((regs_of(o) for o in ops), []) if not op.startswith(("s_cbranch", "s_branch")) else []
            else:
                self.wr = regs_of(ops[0])
                self.rd = sum((regs_of(o) for o in ops[1:]), [])
        self.trans = op.startswith(TRANS)
        self.wrs, self.rds = set(self.wr), set(self.rd)


def need_states(p, c):
    n = 0
    if p.kind == "valu":
        vw = {r for r in p.wrs if r[0] in "va"}
        sw = {r for r in p.wrs if r[0] in ("s", "vcc")}
        if c.kind == "mfma" and vw & c.rds:
            n = max(n, 2)
        if c.kind == "valu":
            if p.trans and (vw & c.rds) and not c.trans:
                n = max(n, 1)
            if p.trans and (vw & c.rds) and c.trans:
                n = max(n, 1)
            if c.op.startswith("v_permlane") and vw & c.rds:
                n = max(n, 2)
            if c.op.startswith(("v_readfirstlane", "v_readlane")) and vw & c.rds:
                n = max(n, 1)
            if "dpp" in c.text and vw & c.rds:
                n = max(n, 2)
            if sw & c.rds:
                n = max(n, 4 if c.op.startswith(("v_readlane", "v_writelane")) else 2)
        if c.kind == "vmem" and sw & c.rds:
            n = max(n, 5)
        if c.kind in ("salu", "smem") and sw & c.rds:
            n = max(n, 1)
        if ("exec", 0) in p.wrs:
            n = max(n, 5)
    if p.kind == "mfma":
        big = 12 if p.passes == 8 else 8
        ovl = 10 if p.passes == 8 else 6
        war = 7 if p.passes == 8 else 3
        if c.kind == "valu" and (p.wrs & (c.rds | c.wrs)):
            n = max(n, big)
        if c.kind in ("ds", "vmem") and (p.wrs & (c.rds | c.wrs)):
            n = max(n, big)
        if c.kind == "mfma":
            if p.wrs & set(c.mA):
                n = max(n, big)
            if p.wrs & set(c.mC):
                if not (p.wr == c.mC and p.passes == c.passes):
                    n = max(n, ovl)
        if c.kind == "valu" and (set(p.mC) & c.wrs):
            n = max(n, war)
    if p.kind == "salu" and ("m0", 0) in p.wrs and c.kind == "vmem" and c.lds_dma:
        n = max(n, 1)
    if p.kind == "vmem" and p.wide:
        if set(p.sdata) & c.wrs:
            n = max(n, 2)
    return n


class Asm:
    def __init__(self):
        self.lines = []
        self.hist = []
        self.lgkm = []
        self.vm = []
        self.smem_out = False
        self.auto = True
        self.trace = []
        self.nops = 0

    def raw(self, text):
        self.lines.append(text)

    def label(self, name):
        self.lines.append(name + ":")
        self.trace.append(("label", name))

    def comment(self, t):
        self.lines.append("    ; " + t)

    def _push(self, ins):
        self.lines.append("    " + ins.text)
        self.hist.append(ins)
        if len(self.hist) > 24:
            self.hist.pop(0)
        self.trace.append(("ins", ins))

    def wait(self, vm=None, lgkm=None):
        parts = []
        if vm is not None:
            assert 0 <= vm <= 63
            parts.append(f"vmcnt({vm})")
            if len(self.vm) > vm:
                self.vm = self.vm[len(self.vm) - vm:] if vm else []
        if lgkm is not None:
            assert 0 <= lgkm <= 15
            parts.append(f"lgkmcnt({lgkm})")
            if len(self.lgkm) > lgkm:
                self.lgkm = self.lgkm[len(self.lgkm) - lgkm:] if lgkm else []
            if lgkm == 0:
                self.smem_out = False
        self._push(Ins("s_waitcnt " + " ".join(parts)))

    def __call__(self, text):
        ins = Ins(text)
        if ins.kind == "wait":
            raise ValueError("use .wait()")
        touched = ins.rds | ins.wrs
        wl = wv = None
        for i, d in enumerate(self.lgkm):
            if d & touched:
                wl = len(self.lgkm) - 1 - i
        for i, d in enumerate(self.vm):
            if d & touched:
                wv = len(self.vm) - 1 - i
        if wl is not None and self.smem_out:
            wl = 0
        if wl is not None or wv is not None:
            if wl is not None and wl > 15:
                wl = 15
            if wv is not None and wv > 63:
                wv = 63
            self.wait(vm=wv, lgkm=wl)
        dist = 0
        need = 0
        for p in reversed(self.hist):
            n = need_states(p, ins)
            if n > dist:
                need = max(need, n - dist)
            dist += p.states
            if dist >= 20:
                break
        while need > 0:
            k = min(need, 16)
            self._push(Ins(f"s_nop {k - 1}"))
            self.nops += k
            need -= k
        self._push(ins)
        if ins.kind == "ds":
            self.lgkm.append(set(ins.wr))
            assert len(self.lgkm) <= 15 or True
        elif ins.kind == "smem":
            self.lgkm.append(set(ins.wr))
            self.smem_out = True
        elif ins.kind == "vmem":
            self.vm.append(set(ins.wr))
        return ins

    def barrier_point(self):
        pass

    def check_loop(self, head_label, tail_index=None):
        idx = max(i for i, (k, v) in enumerate(self.trace) if k == "label" and v == head_label)
        body = [v for k, v in self.trace[idx:] if k == "ins"]
        seq = body + body
        n = len(body)
        for ci in range(n, min(2 * n, n + 24)):
            dist = 0
            for pi in range(ci - 1, max(ci - 24, -1), -1):
                req = need_states(seq[pi], seq[ci])
                if req > dist:
                    raise RuntimeError(f"loop hazard {head_label}: '{seq[pi].text}' -> '{seq[ci].text}' need {req} have {dist}")
                dist += seq[pi].states
                if dist >= 20:
                    break

    def flush_hist(self, states=0):
        self.hist = []

    def text(self):
        return "\n".join(self.lines) + "\n"
```

```python
import math, struct, sys, os
from asmlib import Asm

NAME = "standalone__gqa_block_cached__near_ridge"
STAMPS = int(os.environ.get("STAMPS", "0"))
LOOK = int(os.environ.get("LOOK", "2"))
NT_KV = os.environ.get("NT_KV", " nt")
NT_XW = os.environ.get("NT_XW", " nt")
K2U = int(os.environ.get("K2U", "2"))
OUT = os.environ.get("OUT", f"cdna_kernels/{NAME}.s")

WS_O = 0
WS_WO = 8 << 20
WS_STAMP = 16 << 20
WS_SIZE = 32 << 20
SLOT = 32768
NSLOT = 5


def f32hex(x):
    return "0x%08x" % struct.unpack("<I", struct.pack("<f", x))[0]


SC = math.log2(math.e) / math.sqrt(128.0)

HEADER = """; Kernarg layout for this problem (64 bytes, ptrs only, base s[0:1]):
"""


def vr(a, n=1):
    return f"v{a}" if n == 1 else f"v[{a}:{a + n - 1}]"


def ar(a, n=1):
    return f"a{a}" if n == 1 else f"a[{a}:{a + n - 1}]"


def sr(a, n=1):
    return f"s{a}" if n == 1 else f"s[{a}:{a + n - 1}]"


def srd(A, d, lo, hi, size):
    if lo != d:
        A(f"s_mov_b32 s{d}, s{lo}")
        A(f"s_mov_b32 s{d + 1}, s{hi}")
    if isinstance(size, int):
        A(f"s_mov_b32 s{d + 2}, {size}")
    else:
        A(f"s_mov_b32 s{d + 2}, {size}")
    A(f"s_mov_b32 s{d + 3}, 0x00020000")


class Stamper:
    def __init__(self, A, vt, sidx, stmp):
        self.A, self.vt, self.sidx, self.stmp = A, vt, sidx, stmp

    def init(self):
        if STAMPS:
            self.A(f"v_mov_b32 v{self.vt}, 0")
            self.A(f"s_mov_b32 s{self.sidx}, 0")

    def stamp(self):
        if STAMPS:
            A = self.A
            A(f"s_memtime s[{self.stmp}:{self.stmp + 1}]")
            A.wait(lgkm=0)
            A(f"v_writelane_b32 v{self.vt}, s{self.stmp}, s{self.sidx}")
            A(f"s_add_u32 s{self.sidx}, s{self.sidx}, 1")

    def flush(self, wssrd, s_wave, vlane, kern):
        if STAMPS:
            A = self.A
            A(f"s_lshl_b32 s{self.stmp}, s2, 3")
            A(f"s_add_u32 s{self.stmp}, s{self.stmp}, s{s_wave}")
            A(f"s_lshl_b32 s{self.stmp}, s{self.stmp}, 8")
            A(f"s_add_u32 s{self.stmp}, s{self.stmp}, {WS_STAMP + kern * (1 << 20)}")
            A(f"v_lshlrev_b32 v{self.vt + 1}, 2, v{vlane}")
            A(f"buffer_store_dword v{self.vt}, v{self.vt + 1}, s[{wssrd}:{wssrd + 3}], s{self.stmp} offen")


def interleave(A, mf, fill):
    for t in fill.get(-1, []):
        A(t)
    for i, m in enumerate(mf):
        A(m)
        for t in fill.get(i, []):
            A(t)


def spread(fill, ops, start, per, cost=None):
    s, acc = start, 0.0
    for o in ops:
        c = 2.0 if o.startswith("v_exp") else 1.0
        if acc + c > per + 1e-9 and acc > 0:
            s += 1
            acc = 0.0
        fill.setdefault(s, []).append(o)
        acc += c
    return s


def gen_k1():
    A = Asm()
    K = "k1_kernel"
    A.raw(f".globl {K}\n.p2align 8\n.type {K},@function\n{K}:")
    S_G, S_J, S_HS, S_B, S_HQ, S_WAVE = 20, 21, 22, 23, 24, 25
    X, KS, VS, WQ, WO, WS = 28, 32, 36, 40, 44, 48
    S_U, S_SLOT, S_KC, S_T0, S_T1, S_KOFF, S_VOFF, S_ROT = 52, 53, 54, 55, 56, 57, 58, 59
    S_CNT, S_C, S_IDX, S_TM = 60, 61, 62, 64
    A("s_cmp_ge_u32 s2, 256")
    A("s_cbranch_scc1 L1_end")
    A("s_load_dwordx16 s[4:19], s[0:1], 0")
    A("v_lshrrev_b32 v1, 6, v0")
    A(f"s_and_b32 s{S_G}, s2, 7")
    A(f"v_readfirstlane_b32 s{S_WAVE}, v1")
    A(f"s_lshr_b32 s{S_J}, s2, 3")
    A(f"s_and_b32 s{S_HS}, s{S_J}, 3")
    A(f"s_lshr_b32 s{S_B}, s{S_J}, 2")
    A(f"s_lshl_b32 s{S_HQ}, s{S_G}, 2")
    A(f"s_add_u32 s{S_HQ}, s{S_HQ}, s{S_HS}")
    A("v_and_b32 v0, 63, v0")
    ST = Stamper(A, 250, S_IDX, S_TM)
    ST.init()
    A(f"s_cmp_lg_u32 s{S_WAVE}, 0")
    A("s_cbranch_scc1 L1_compute")

    VX, VW, VK, VV, VO = 2, 6, 10, 14, 16
    T0, T1, T2, T3 = 40, 41, 42, 43
    A(f"v_lshrrev_b32 v{T0}, 4, v0")
    A(f"v_and_b32 v{T1}, 15, v0")
    A(f"v_lshrrev_b32 v{T2}, 3, v0")
    A(f"v_and_b32 v{T3}, 7, v0")
    A(f"v_mul_u32_u24 v{T2}, 1152, v{T2}")
    for m in range(2):
        A(f"v_add_u32 v{VX + m}, {4 * m}, v{T0}")
        A(f"v_xor_b32 v{VX + m}, v{VX + m}, v{T3}")
        A(f"v_lshl_add_u32 v{VX + m}, v{VX + m}, 4, v{T2}")
    A(f"v_add_u32 v{VX + 1}, 8192, v{VX + 1}")
    A(f"v_add_u32 v{VX + 2}, 16384, v{VX + 0}")
    A(f"v_add_u32 v{VX + 3}, 16384, v{VX + 1}")
    A(f"v_lshlrev_b32 v{T2}, 2, v{T0}")
    A(f"v_xor_b32 v{T2}, v{T2}, v{T1}")
    A(f"v_lshlrev_b32 v{T2}, 4, v{T2}")
    A(f"v_lshl_add_u32 v{VW}, v{T0}, 13, v{T2}")
    for m in range(1, 4):
        A(f"v_add_u32 v{VW + m}, {31744 * m}, v{VW}")
    A(f"v_lshl_add_u32 v{VV}, v{T0}, 8, v{T2}")
    for m in range(4):
        A(f"v_add_u32 v{VK + m}, {4 * m}, v{T0}")
        A(f"v_xor_b32 v{VK + m}, v{VK + m}, v{T1}")
        A(f"v_lshlrev_b32 v{VK + m}, 4, v{VK + m}")
        A(f"v_lshl_add_u32 v{VK + m}, v{T0}, 8, v{VK + m}")
    A(f"s_lshl_b32 s{S_KC}, s{S_HS}, 1")
    A(f"s_add_u32 s{S_KC}, s{S_KC}, s{S_B}")
    A(f"s_cmp_ge_u32 s{S_KC}, 9")
    A(f"s_cselect_b32 s{S_T0}, 9, 0")
    A(f"s_sub_u32 s{S_KC}, s{S_KC}, s{S_T0}")
    A(f"s_add_u32 s{S_ROT}, s{S_B}, s{S_G}")
    A(f"s_and_b32 s{S_ROT}, s{S_ROT}, 7")
    A(f"s_lshl_b32 s{S_KOFF}, s{S_ROT}, 14")
    A(f"s_mov_b32 s{S_VOFF}, s{S_KOFF}")
    A(f"s_mov_b32 s{S_U}, 0")
    A(f"s_mov_b32 s{S_SLOT}, 0")
    A.wait(lgkm=0)
    A(f"s_mul_i32 s{S_T0}, s{S_B}, 110592")
    A(f"s_add_u32 s{X}, s4, s{S_T0}")
    A(f"s_addc_u32 s{X + 1}, s5, 0")
    srd(A, X, X, X + 1, 110592)
    A(f"s_lshl_b32 s{S_T0}, s{S_HQ}, 8")
    A(f"s_add_u32 s{WQ}, s10, s{S_T0}")
    A(f"s_addc_u32 s{WQ + 1}, s11, 0")
    A(f"s_sub_u32 s{WQ + 2}, 4718592, s{S_T0}")
    A(f"s_mov_b32 s{WQ + 3}, 0x00020000")
    A(f"s_lshr_b32 s{S_T0}, s{S_HQ}, 1")
    A(f"s_lshl_b32 s{S_T1}, s{S_B}, 4")
    A(f"s_add_u32 s{S_T0}, s{S_T0}, s{S_T1}")
    A(f"s_lshl_b32 s{S_T0}, s{S_T0}, 17")
    A(f"s_add_u32 s{KS}, s6, s{S_T0}")
    A(f"s_addc_u32 s{KS + 1}, s7, 0")
    srd(A, KS, KS, KS + 1, 131072)
    A(f"s_add_u32 s{VS}, s8, s{S_T0}")
    A(f"s_addc_u32 s{VS + 1}, s9, 0")
    srd(A, VS, VS, VS + 1, 131072)
    srd(A, WO, 12, 13, 4718592)
    srd(A, WS, 18, 19, WS_SIZE)
    ST.stamp()

    sizes = [28] * 9 + [16] + [32] * 7 + [16] + [18]
    A.label("L1_ld_loop")
    A(f"s_cmp_lt_u32 s{S_U}, {LOOK}")
    A("s_cbranch_scc1 L1_ld_issue")
    cnts = {}
    for u in range(LOOK, 18 + LOOK):
        t = u - LOOK
        c = sum(sizes[i] for i in range(t + 1, u) if i < len(sizes))
        cnts[u] = min(c, 63)
    runs = []
    for u in sorted(cnts):
        if runs and runs[-1][2] == cnts[u]:
            runs[-1][1] = u
        else:
            runs.append([u, u, cnts[u]])
    for i, (u0, u1, c) in enumerate(runs):
        if i < len(runs) - 1:
            A(f"s_cmp_gt_u32 s{S_U}, {u1}")
            A(f"s_cbranch_scc1 L1_w{i + 1}")
            A.wait(vm=c)
            A("s_branch L1_ld_bar")
            A.label(f"L1_w{i + 1}")
        else:
            A.wait(vm=c)
    A.label("L1_ld_bar")
    ST.stamp()
    A("s_barrier")
    A.label("L1_ld_issue")
    A(f"s_cmp_gt_u32 s{S_U}, 8")
    A("s_cbranch_scc1 L1_ld_kv")
    A(f"s_lshl_b32 s{S_T0}, s{S_KC}, 7")
    A(f"s_lshl_b32 s{S_T1}, s{S_KC}, 19")
    order = [("w", 0), ("x", 0), ("w", 1), ("x", 1), ("w", 2), ("x", 2), ("w", 3)]
    for typ, gi in order:
        if typ == "x":
            A(f"s_add_u32 m0, s{S_SLOT}, {gi * 4096}")
            if gi:
                A(f"s_add_u32 s{S_T0}, s{S_T0}, 36864")
            for m in range(4):
                A(f"buffer_load_dwordx4 v{VX + m}, s[{X}:{X + 3}], s{S_T0} offen offset:{m * 1024}{NT_XW} lds")
        else:
            A(f"s_add_u32 m0, s{S_SLOT}, {12288 + gi * 4096}")
            if gi:
                A(f"s_add_u32 s{S_T1}, s{S_T1}, 131072")
            for m in range(4):
                A(f"buffer_load_dwordx4 v{VW + m}, s[{WQ}:{WQ + 3}], s{S_T1} offen offset:{m * 1024}{NT_XW} lds")
    A(f"s_add_u32 s{S_KC}, s{S_KC}, 1")
    A(f"s_cmp_eq_u32 s{S_KC}, 9")
    A(f"s_cselect_b32 s{S_KC}, 0, s{S_KC}")
    A("s_branch L1_ld_next")
    A.label("L1_ld_kv")
    A(f"s_cmp_gt_u32 s{S_U}, 16")
    A("s_cbranch_scc1 L1_ld_v")
    for gi in range(4):
        A(f"s_add_u32 m0, s{S_SLOT}, {gi * 4096}")
        A(f"s_add_u32 s{S_T0}, s{S_KOFF}, {gi * 4096}")
        for m in range(4):
            A(f"buffer_load_dwordx4 v{VK + m}, s[{KS}:{KS + 3}], s{S_T0} offen offset:{m * 1024}{NT_KV} lds")
    A(f"s_add_u32 s{S_KOFF}, s{S_KOFF}, 16384")
    A(f"s_and_b32 s{S_KOFF}, s{S_KOFF}, 0x1ffff")
    A(f"s_cmp_eq_u32 s{S_U}, 9")
    A("s_cbranch_scc1 L1_ld_next")
    A.label("L1_ld_v")
    A(f"s_cmp_gt_u32 s{S_U}, 17")
    A("s_cbranch_scc1 L1_ld_wo")
    for gi in range(4):
        A(f"s_add_u32 m0, s{S_SLOT}, {16384 + gi * 4096}")
        A(f"s_add_u32 s{S_T0}, s{S_VOFF}, {gi * 4096}")
        for m in range(4):
            A(f"buffer_load_dwordx4 v{VV}, s[{VS}:{VS + 3}], s{S_T0} offen offset:{m * 1024}{NT_KV} lds")
    A(f"s_add_u32 s{S_VOFF}, s{S_VOFF}, 16384")
    A(f"s_and_b32 s{S_VOFF}, s{S_VOFF}, 0x1ffff")
    A("s_branch L1_ld_next")
    A.label("L1_ld_wo")
    A(f"s_cmp_gt_u32 s{S_U}, 18")
    A("s_cbranch_scc1 L1_ld_next")
    WO_SLOT = (18 % NSLOT) * SLOT
    A(f"s_lshl_b32 s{S_T0}, s{S_G}, 4")
    A(f"s_lshr_b32 s{S_T1}, s{S_J}, 1")
    A(f"s_add_u32 s{S_KC}, s{S_T0}, s{S_T1}")
    A(f"s_mul_i32 s{S_T0}, s{S_KC}, {32 * 1152}")
    A(f"s_and_b32 s{S_ROT}, s{S_J}, 1")
    A(f"s_mul_i32 s{S_T1}, s{S_ROT}, 576")
    A(f"s_add_u32 s{S_T0}, s{S_T0}, s{S_T1}")
    A(f"v_lshlrev_b32 v{T1}, 4, v0")
    for i in range(18):
        A(f"v_add_u32 v{T0}, {64 * i}, v0")
        A(f"v_mul_u32_u24 v{T0}, 1821, v{T0}")
        A(f"v_lshrrev_b32 v{T0}, 16, v{T0}")
        A(f"v_mul_u32_u24 v{T0}, 576, v{T0}")
        A(f"v_add_u32 v{VO + i}, v{T0}, v{T1}")
        if i % 4 == 0:
            A(f"s_mov_b32 m0, {WO_SLOT + (i // 4) * 4096}")
            if i:
                A(f"s_add_u32 s{S_T0}, s{S_T0}, 4096")
        A(f"buffer_load_dwordx4 v{VO + i}, s[{WO}:{WO + 3}], s{S_T0} offen offset:{(i % 4) * 1024}{NT_XW} lds")
    A.label("L1_ld_next")
    A(f"s_add_u32 s{S_SLOT}, s{S_SLOT}, {SLOT}")
    A(f"s_cmp_eq_u32 s{S_SLOT}, {SLOT * NSLOT}")
    A(f"s_cselect_b32 s{S_SLOT}, 0, s{S_SLOT}")
    A(f"s_add_u32 s{S_U}, s{S_U}, 1")
    A(f"s_cmp_lt_u32 s{S_U}, {18 + LOOK}")
    A("s_cbranch_scc1 L1_ld_loop")
    A.vm = []
    A(f"v_lshrrev_b32 v{T0}, 5, v0")
    A(f"v_lshlrev_b32 v{T0}, 4, v{T0}")
    A(f"v_bfe_u32 v{T1}, v0, 4, 1")
    A(f"v_lshl_add_u32 v{T0}, v{T1}, 2, v{T0}")
    A(f"v_bfe_u32 v{T1}, v0, 2, 2")
    A(f"v_add_u32 v{T0}, v{T0}, v{T1}")
    A(f"v_mul_u32_u24 v{T0}, 576, v{T0}")
    A(f"v_and_b32 v{T1}, 3, v0")
    A(f"v_lshl_add_u32 v{T0}, v{T1}, 3, v{T0}")
    A(f"v_add_u32 v{T0}, {WO_SLOT}, v{T0}")
    A(f"v_lshlrev_b32 v{T1}, 4, v0")
    A(f"s_mul_i32 s{S_T0}, s{S_ROT}, {18 * 131072}")
    A(f"s_lshl_b32 s{S_T1}, s{S_KC}, 10")
    A(f"s_add_u32 s{S_T0}, s{S_T0}, s{S_T1}")
    A(f"s_add_u32 s{S_T0}, s{S_T0}, {WS_WO}")
    A.wait(vm=0)
    ST.stamp()
    RB = 64
    for cb in range(18):
        A(f"ds_read_b64_tr_b16 {vr(RB + 4 * cb, 2)}, v{T0} offset:{cb * 32}")
        A(f"ds_read_b64_tr_b16 {vr(RB + 4 * cb + 2, 2)}, v{T0} offset:{cb * 32 + 8 * 576}")
    for cb in range(18):
        A(f"buffer_store_dwordx4 {vr(RB + 4 * cb, 4)}, v{T1}, s[{WS}:{WS + 3}], s{S_T0} offen")
        A(f"s_add_u32 s{S_T0}, s{S_T0}, 131072")
    ST.stamp()
    ST.flush(WS, S_WAVE, 0, 0)
    A("s_endpgm")

    A.hist, A.vm, A.lgkm, A.smem_out = [], [], [{("s", i) for i in range(4, 20)}], True
    A.label("L1_compute")
    AD, AV = 2, 10
    BX, BW, BK, BV = 14, 15, 16, 17
    M, MC, AL, T0, T1, T2, T3 = 18, 19, 20, 21, 22, 23, 24
    ONES = 28
    QF, S, P, O, L = 32, 64, 96, 112, 176
    AK, AVF = 0, 64
    A(f"s_sub_u32 s{S_WAVE}, s{S_WAVE}, 1")
    A(f"v_and_b32 v{T0}, 31, v0")
    A(f"v_lshrrev_b32 v{T1}, 5, v0")
    A(f"v_bfe_u32 v{T2}, v0, 1, 3")
    A(f"v_xor_b32 v{T2}, v{T2}, v{T1}")
    A(f"v_lshlrev_b32 v{T2}, 4, v{T2}")
    A(f"v_lshl_add_u32 v{BX}, v{T0}, 7, v{T2}")
    A(f"s_lshl_b32 s{S_T0}, s{S_WAVE}, 12")
    A(f"v_add_u32 v{BX}, s{S_T0}, v{BX}")
    A(f"v_and_b32 v{T2}, 15, v0")
    A(f"v_xor_b32 v{T2}, v{T2}, v{T1}")
    A(f"v_lshlrev_b32 v{T2}, 4, v{T2}")
    A(f"v_lshl_add_u32 v{BK}, v{T0}, 8, v{T2}")
    A(f"v_bfe_u32 v{T0}, v0, 2, 2")
    A(f"v_mul_u32_u24 v{T0}, 320, v{T0}")
    A(f"v_bfe_u32 v{T2}, v0, 4, 1")
    A(f"v_lshl_add_u32 v{T0}, v{T2}, 5, v{T0}")
    A(f"v_and_b32 v{T2}, 3, v0")
    A(f"v_lshl_add_u32 v{BV}, v{T2}, 3, v{T0}")
    A(f"v_lshl_add_u32 v{BV}, v{T1}, 10, v{BV}")
    A(f"v_and_b32 v{T2}, 1, v0")
    A(f"v_lshl_add_u32 v{BW}, v{T2}, 4, v{T0}")
    A(f"v_bfe_u32 v{T2}, v0, 1, 1")
    A(f"v_lshl_add_u32 v{BW}, v{T2}, 3, v{BW}")
    A(f"v_lshl_add_u32 v{BW}, v{T1}, 11, v{BW}")
    for i in range(64):
        A(f"v_mov_b32 v{O + i}, 0")
    for i in range(4):
        A(f"v_mov_b32 v{ONES + i}, 0x3f803f80")
    A(f"s_mov_b32 s{S_SLOT}, 0")
    A(f"s_mov_b32 s{S_CNT}, 0")
    A(f"s_mov_b32 s{S_C}, {f32hex(SC)}")
    A.wait(lgkm=0)
    srd(A, WS, 18, 19, WS_SIZE)
    ST.stamp()

    def next_slot():
        return [f"s_add_u32 s{S_SLOT}, s{S_SLOT}, {SLOT}",
                f"s_cmp_eq_u32 s{S_SLOT}, {SLOT * NSLOT}",
                f"s_cselect_b32 s{S_SLOT}, 0, s{S_SLOT}"]

    def addr_ops(base, dst, n, step):
        ops = [f"v_add_u32 v{dst}, s{S_SLOT}, v{base}"]
        for i in range(1, n):
            ops.append(f"v_xor_b32 v{dst + i}, {i * step}, v{dst}")
        return ops

    MF = "v_mfma_f32_32x32x16_bf16"
    for t in addr_ops(BX, AD, 4, 32) + addr_ops(BW, AV, 4, 64):
        A(t)
    A.label("L1_xw")
    A("s_barrier")
    ST.stamp()
    reads = []
    for ks in range(4):
        reads.append(f"ds_read_b128 {ar(AVF + 4 * ks, 4)}, v{AD + ks}")
        for dt in range(4):
            f = AK + 4 * (4 * ks + dt)
            reads.append(f"ds_read_b64_tr_b16 {ar(f, 2)}, v{AV + dt} offset:{12288 + ks * 4096}")
            reads.append(f"ds_read_b64_tr_b16 {ar(f + 2, 2)}, v{AV + dt} offset:{12288 + ks * 4096 + 1024}")
    mf = [f"{MF} {vr(O + 16 * dt, 16)}, {ar(AK + 4 * (4 * ks + dt), 4)}, {ar(AVF + 4 * ks, 4)}, {vr(O + 16 * dt, 16)}"
          for ks in range(4) for dt in range(4)]
    fill = {-1: reads[:14]}
    last = spread(fill, reads[14:], 0, 3)
    tail = next_slot() + addr_ops(BX, AD, 4, 32) + addr_ops(BW, AV, 4, 64) + [f"s_add_u32 s{S_CNT}, s{S_CNT}, 1"]
    spread(fill, tail, last + 1, 3)
    interleave(A, mf, fill)
    A(f"s_cmp_lt_u32 s{S_CNT}, 9")
    A("s_cbranch_scc1 L1_xw")
    A.check_loop("L1_xw")
    for t in addr_ops(BK, AD, 8, 32):
        A(t)
    for i in range(32):
        A(f"v_cvt_pk_bf16_f32 v{QF + i}, v{O + 2 * i}, v{O + 2 * i + 1}")
    for i in range(64):
        A(f"v_mov_b32 v{O + i}, 0")
    for i in range(16):
        A(f"v_mov_b32 v{L + i}, 0")

    def k_reads():
        return [f"ds_read_b128 {ar(AK + 4 * (8 * kt + ks), 4)}, v{AD + ks} offset:{kt * 8192}"
                for kt in range(2) for ks in range(8)]

    def v_reads(dt_outer=False):
        r = []
        it = [(tp, dt) for tp in range(4) for dt in range(4)]
        if dt_outer:
            it = [(tp, dt) for dt in range(4) for tp in range(4)]
        for tp, dt in it:
            f = AVF + 4 * (4 * tp + dt)
            r.append(f"ds_read_b64_tr_b16 {ar(f, 2)}, v{AV + dt} offset:{16384 + tp * 4096}")
            r.append(f"ds_read_b64_tr_b16 {ar(f + 2, 2)}, v{AV + dt} offset:{16384 + tp * 4096 + 2048}")
        return r

    def qk_mf():
        return [f"{MF} {vr(S + 16 * kt, 16)}, {ar(AK + 4 * (8 * kt + ks), 4)}, {vr(QF + 4 * ks, 4)}, "
                + ("0" if ks == 0 else vr(S + 16 * kt, 16)) for kt in range(2) for ks in range(8)]

    def pv(tp, dt):
        return f"{MF} {vr(O + 16 * dt, 16)}, {ar(AVF + 4 * (4 * tp + dt), 4)}, {vr(P + 4 * tp, 4)}, {vr(O + 16 * dt, 16)}"

    def lm(tp):
        return f"{MF} {vr(L, 16)}, {vr(ONES, 4)}, {vr(P + 4 * tp, 4)}, {vr(L, 16)}"

    def max_ops(kt, first):
        b = S + 16 * kt
        ops = []
        if kt == 0:
            if first:
                ops.append(f"v_max_f32 v{T0}, v{b}, v{b + 1}")
            else:
                ops.append(f"v_max3_f32 v{T0}, v{b}, v{b + 1}, v{M}")
            ops.append(f"v_max_f32 v{T1}, v{b + 2}, v{b + 3}")
            rest = range(4, 16, 2)
        else:
            rest = range(0, 16, 2)
        for n, i in enumerate(rest):
            t = T0 if n % 2 == 0 else T1
            ops.append(f"v_max3_f32 v{t}, v{b + i}, v{b + i + 1}, v{t}")
        return ops

    def max_fin(first):
        ops = [f"v_max_f32 v{T0}, v{T0}, v{T1}",
               f"v_mov_b32 v{T1}, v{T0}",
               f"v_permlane32_swap_b32 v{T0}, v{T1}",
               f"v_max_f32 v{M}, v{T0}, v{T1}"]
        if first:
            ops += [f"v_mul_f32 v{MC}, s{S_C}, v{M}", f"v_mov_b32 v{AL}, 1.0"]
        else:
            ops += [f"v_mov_b32 v{T2}, v{MC}",
                    f"v_mul_f32 v{MC}, s{S_C}, v{M}",
                    f"v_sub_f32 v{T2}, v{T2}, v{MC}",
                    f"v_exp_f32 v{AL}, v{T2}"]
        return ops

    def p_chunk(tp):
        b = S + 8 * tp
        ops = []
        for i in range(8):
            ops.append(f"v_fma_f32 v{b + i}, v{b + i}, s{S_C}, -v{MC}")
        for i in range(8):
            ops.append(f"v_exp_f32 v{b + i}, v{b + i}")
        return ops, [f"v_cvt_pk_bf16_f32 v{P + 4 * tp + i}, v{b + 2 * i}, v{b + 2 * i + 1}" for i in range(4)]

    def rescale():
        return [f"v_mul_f32 v{L}, v{AL}, v{L}"] + [f"v_mul_f32 v{O + i}, v{AL}, v{O + i}" for i in range(64)]

    A("s_barrier")
    ST.stamp()
    kr = k_reads()
    fill = {-1: kr[:10]}
    last = spread(fill, kr[10:], 0, 2)
    spread(fill, next_slot() + addr_ops(BK, AD, 8, 32) + addr_ops(BV, AV, 4, 64), last + 1, 4)
    spread(fill, max_ops(0, True), 11, 2)
    interleave(A, qk_mf(), fill)
    for t in max_ops(1, True) + max_fin(True):
        A(t)
    for tp in range(4):
        a, b = p_chunk(tp)
        for t in a + b:
            A(t)
    A(f"s_mov_b32 s{S_CNT}, 0")
    A.label("L1_kv")
    A("s_barrier")
    ST.stamp()
    kr, vrd, rs = k_reads(), v_reads(), rescale()
    mf = qk_mf()
    for tp in range(4):
        mf += [pv(tp, dt) for dt in range(4)] + [lm(tp)]
    fill = {-1: kr[:8] + rs[:12] + kr[8:12] + rs[12:24]}
    spread(fill, kr[12:] + vrd, 0, 2)
    spread(fill, rs[24:], 0, 4)
    spread(fill, max_ops(0, False), 11, 2)
    last = spread(fill, max_ops(1, False) + max_fin(False), 18, 6)
    s0 = last + 1
    for tp in range(4):
        a, b = p_chunk(tp)
        last = spread(fill, a, s0, 6)
        last = max(last, 20 + 5 * tp)
        last = spread(fill, b, last, 100)
        s0 = last + 1
    tail = next_slot() + addr_ops(BK, AD, 8, 32) + addr_ops(BV, AV, 4, 64) + [f"s_add_u32 s{S_CNT}, s{S_CNT}, 1"]
    over = {k: v for k, v in fill.items() if k >= len(mf)}
    for k in over:
        del fill[k]
    interleave(A, mf, fill)
    for k in sorted(over):
        for t in over[k]:
            A(t)
    for t in tail:
        A(t)
    A(f"s_cmp_lt_u32 s{S_CNT}, 7")
    A("s_cbranch_scc1 L1_kv")
    A.check_loop("L1_kv")
    rs = rescale()
    fill = {-1: rs[:1]}
    spread(fill, rs[1:], 0, 16)
    interleave(A, [lm(tp) for tp in range(4)], fill)
    A(f"v_bfe_u32 v{T0}, v0, 4, 1")
    A(f"v_lshlrev_b32 v{T0}, 17, v{T0}")
    A(f"v_lshrrev_b32 v{T1}, 5, v0")
    A(f"v_lshl_add_u32 v{T0}, v{T1}, 8, v{T0}")
    A(f"v_and_b32 v{T1}, 15, v0")
    A(f"v_lshl_add_u32 v{T0}, v{T1}, 4, v{T0}")
    A(f"s_mul_i32 s{S_T0}, s{S_B}, 6")
    A(f"s_lshl_b32 s{S_T1}, s{S_WAVE}, 1")
    A(f"s_add_u32 s{S_T0}, s{S_T0}, s{S_T1}")
    A(f"s_lshl_b32 s{S_T0}, s{S_T0}, 17")
    A(f"s_lshl_b32 s{S_T1}, s{S_HQ}, 12")
    A(f"s_add_u32 s{S_T0}, s{S_T0}, s{S_T1}")
    if WS_O:
        A(f"s_add_u32 s{S_T0}, s{S_T0}, {WS_O}")
    A(f"v_rcp_f32 v{AL}, v{L}")
    A("s_barrier")
    ST.stamp()
    vrd = v_reads(True)
    mf = [pv(tp, dt) for dt in range(4) for tp in range(4)]
    fill = {-1: vrd[:14]}
    spread(fill, vrd[14:], 0, 3)

    def fin(dt):
        ops = []
        for t in range(2):
            b = O + 16 * dt + 8 * t
            for i in range(8):
                ops.append(f"v_mul_f32 v{b + i}, v{AL}, v{b + i}")
            d = S + 8 * dt + 4 * t
            for i in range(4):
                ops.append(f"v_cvt_pk_bf16_f32 v{d + i}, v{b + 2 * i}, v{b + 2 * i + 1}")
            ops.append(f"buffer_store_dwordx4 {vr(d, 4)}, v{T0}, s[{WS}:{WS + 3}], s{S_T0} offen offset:{dt * 1024 + t * 512}")
        return ops
    for dt in range(3):
        spread(fill, fin(dt), 4 * dt + 6, 7)
    over = {k: v for k, v in fill.items() if k >= len(mf)}
    for k in over:
        del fill[k]
    interleave(A, mf, fill)
    for k in sorted(over):
        for t in over[k]:
            A(t)
    for t in fin(3):
        A(t)
    ST.stamp()
    A(f"s_add_u32 s{S_WAVE}, s{S_WAVE}, 1")
    ST.flush(WS, S_WAVE, 0, 0)
    A.label("L1_end")
    A("s_endpgm")
    desc = dict(name=K, vgpr=(256 + 128 if STAMPS else 192 + 128), accum=(256 if STAMPS else 192), sgpr=72)
    return A, desc


def gen_k2():
    A = Asm()
    K = "k2_kernel"
    U = K2U
    A.raw(f".globl {K}\n.p2align 8\n.type {K},@function\n{K}:")
    S_G, S_J, S_RG, S_CG, S_WAVE, S_T0, S_T1, S_KO, S_CNT, S_BASE = 20, 21, 22, 23, 24, 25, 26, 27, 36, 37
    WS, OS = 28, 32
    S_IDX, S_TM = 38, 40
    VA = 2
    T0, T1 = 8, 9
    ACC = 12
    FR = 48
    A("s_cmp_ge_u32 s2, 192")
    A("s_cbranch_scc1 L2_end")
    A("s_load_dwordx4 s[4:7], s[0:1], 48")
    A("s_load_dwordx2 s[8:9], s[0:1], 40")
    A("v_lshrrev_b32 v1, 6, v0")
    A(f"s_and_b32 s{S_G}, s2, 7")
    A(f"v_readfirstlane_b32 s{S_WAVE}, v1")
    A("v_and_b32 v0, 63, v0")
    ST = Stamper(A, 250, S_IDX, S_TM)
    ST.init()
    A(f"s_lshr_b32 s{S_J}, s2, 3")
    A(f"s_lshr_b32 s{S_T0}, s{S_G}, 1")
    A(f"s_lshl_b32 s{S_T0}, s{S_T0}, 2")
    A(f"s_and_b32 s{S_T1}, s{S_J}, 3")
    A(f"s_add_u32 s{S_RG}, s{S_T0}, s{S_T1}")
    A(f"s_lshl_b32 s{S_KO}, s{S_T1}, 1")
    A(f"s_and_b32 s{S_T0}, s{S_G}, 1")
    A(f"s_mul_i32 s{S_T0}, s{S_T0}, 6")
    A(f"s_lshr_b32 s{S_T1}, s{S_J}, 2")
    A(f"s_add_u32 s{S_CG}, s{S_T0}, s{S_T1}")
    A(f"s_add_u32 s{S_KO}, s{S_KO}, s{S_T1}")
    A(f"s_and_b32 s{S_KO}, s{S_KO}, 7")
    A(f"s_lshl_b32 s{S_KO}, s{S_KO}, 12")
    A(f"s_lshl_b32 s{S_BASE}, s{S_WAVE}, 15")
    A(f"v_lshlrev_b32 v{T0}, 4, v0")
    A(f"s_mul_i32 s{S_T0}, s{S_CG}, {3 * 131072}")
    A(f"s_add_u32 s{S_T0}, s{S_T0}, {WS_WO}")
    A(f"s_add_u32 s{S_T0}, s{S_T0}, s{S_BASE}")
    A(f"v_add_u32 v{VA}, s{S_T0}, v{T0}")
    A(f"v_add_u32 v{VA + 1}, 131072, v{VA}")
    A(f"v_add_u32 v{VA + 2}, 262144, v{VA}")
    A(f"s_mul_i32 s{S_T0}, s{S_RG}, {3 * 131072}")
    if WS_O:
        A(f"s_add_u32 s{S_T0}, s{S_T0}, {WS_O}")
    A(f"s_add_u32 s{S_T0}, s{S_T0}, s{S_BASE}")
    A(f"v_add_u32 v{VA + 3}, s{S_T0}, v{T0}")
    A(f"v_add_u32 v{VA + 4}, 131072, v{VA + 3}")
    A(f"v_add_u32 v{VA + 5}, 262144, v{VA + 3}")
    for i in range(36):
        A(f"v_mov_b32 v{ACC + i}, 0")
    A(f"s_mov_b32 s{S_CNT}, 0")
    A.wait(lgkm=0)
    srd(A, WS, 6, 7, WS_SIZE)
    srd(A, OS, 8, 9, 884736)
    ST.stamp()

    def loads(m):
        return [f"buffer_load_dwordx4 {vr(FR + 24 * m + 4 * i, 4)}, v{VA + i}, s[{WS}:{WS + 3}], s{S_KO} offen offset:{m * 1024}"
                for i in (0, 3, 4, 5, 1, 2)]

    def mfs(m):
        return [f"v_mfma_f32_16x16x32_bf16 {vr(ACC + 4 * (3 * a + b), 4)}, {vr(FR + 24 * m + 4 * a, 4)}, "
                f"{vr(FR + 24 * m + 12 + 4 * b, 4)}, {vr(ACC + 4 * (3 * a + b), 4)}" for a in range(3) for b in range(3)]

    def adv():
        A(f"s_add_u32 s{S_KO}, s{S_KO}, {1024 * U}")
        A(f"s_and_b32 s{S_KO}, s{S_KO}, 0x7fff")
    for m in range(U):
        for t in loads(m):
            A(t)
    adv()
    state0 = [set(x) for x in A.vm]
    A.label("L2_loop")
    for m in range(U):
        for t in mfs(m):
            A(t)
        for t in loads(m):
            A(t)
    adv()
    A(f"s_add_u32 s{S_CNT}, s{S_CNT}, 1")
    A(f"s_cmp_lt_u32 s{S_CNT}, {32 // U - 1}")
    A("s_cbranch_scc1 L2_loop")
    A.check_loop("L2_loop")
    assert [set(x) for x in A.vm] == state0, (A.vm, state0)
    for m in range(U):
        for t in mfs(m):
            A(t)
    ST.stamp()
    A(f"s_mul_i32 s{S_T0}, s{S_WAVE}, 9216")
    A(f"v_add_u32 v{T1}, s{S_T0}, v{T0}")
    for i in range(9):
        A(f"ds_write_b128 v{T1}, {vr(ACC + 4 * i, 4)} offset:{i * 1024}")
    A(f"v_and_b32 v{VA}, 15, v0")
    A(f"v_mul_u32_u24 v{VA}, 1152, v{VA}")
    A(f"v_lshrrev_b32 v{VA + 1}, 4, v0")
    A(f"v_lshl_add_u32 v{VA}, v{VA + 1}, 3, v{VA}")
    A(f"s_mul_i32 s{S_T0}, s{S_RG}, {48 * 1152}")
    A(f"s_mul_i32 s{S_T1}, s{S_CG}, 96")
    A(f"s_add_u32 s{S_BASE}, s{S_T0}, s{S_T1}")
    A(f"s_lshl_b32 s{S_T0}, s{S_WAVE}, 10")
    A(f"v_add_u32 v{T1}, s{S_T0}, v{T0}")
    A.wait(lgkm=0)
    A("s_barrier")
    for rep in range(3):
        if rep == 2:
            A(f"s_cmp_lg_u32 s{S_WAVE}, 0")
            A("s_cbranch_scc1 L2_done")
        for w in range(4):
            A(f"ds_read_b128 {vr(FR + 16 * rep + 4 * w, 4)}, v{T1} offset:{w * 9216 + rep * 4096}")
        A(f"s_add_u32 s{S_T0}, s{S_WAVE}, {4 * rep}")
        A(f"s_mul_i32 s{S_T1}, s{S_T0}, 11")
        A(f"s_lshr_b32 s{S_T1}, s{S_T1}, 5")
        A(f"s_mul_i32 s{S_KO}, s{S_T1}, 3")
        A(f"s_sub_u32 s{S_T0}, s{S_T0}, s{S_KO}")
        A(f"s_mul_i32 s{S_T0}, s{S_T0}, {16 * 1152}")
        A(f"s_lshl_b32 s{S_T1}, s{S_T1}, 5")
        A(f"s_add_u32 s{S_T0}, s{S_T0}, s{S_T1}")
        A(f"s_add_u32 s{S_T0}, s{S_T0}, s{S_BASE}")
        b = FR + 16 * rep
        for r in range(4):
            A(f"v_add_f32 v{b + r}, v{b + r}, v{b + 4 + r}")
            A(f"v_add_f32 v{b + 8 + r}, v{b + 8 + r}, v{b + 12 + r}")
        for r in range(4):
            A(f"v_add_f32 v{b + r}, v{b + r}, v{b + 8 + r}")
        A(f"v_cvt_pk_bf16_f32 v{b}, v{b}, v{b + 1}")
        A(f"v_cvt_pk_bf16_f32 v{b + 1}, v{b + 2}, v{b + 3}")
        A(f"buffer_store_dwordx2 {vr(b, 2)}, v{VA}, s[{OS}:{OS + 3}], s{S_T0} offen")
    A.label("L2_done")
    ST.stamp()
    ST.flush(WS, S_WAVE, 0, 1)
    A.label("L2_end")
    A("s_endpgm")
    nv = max(FR + 24 * U, FR + 48)
    nv = 256 if STAMPS else (nv + 3) // 4 * 4
    desc = dict(name=K, vgpr=nv, accum=nv, sgpr=48)
    return A, desc


def descriptor(d):
    return f""".amdhsa_kernel {d['name']}
  .amdhsa_next_free_vgpr {d['vgpr']}
  .amdhsa_next_free_sgpr {d['sgpr']}
  .amdhsa_accum_offset {d['accum']}
  .amdhsa_group_segment_fixed_size 0
  .amdhsa_kernarg_size 64
  .amdhsa_user_sgpr_count 2
  .amdhsa_user_sgpr_kernarg_segment_ptr 1
  .amdhsa_system_sgpr_workgroup_id_x 1
.end_amdhsa_kernel
"""


def main():
    a1, d1 = gen_k1()
    a2, d2 = gen_k2()
    txt = HEADER
    txt += "; @launch kernel=k1_kernel grid=(256,1,1) block=(256,1,1) lds=163840\n"
    txt += "; @launch kernel=k2_kernel grid=(192,1,1) block=(256,1,1) lds=36864\n"
    txt += '.amdgcn_target "amdgcn-amd-amdhsa--gfx950"\n.text\n'
    txt += a1.text() + a2.text()
    txt += '.section .rodata,"a"\n.p2align 6\n' + descriptor(d1) + ".p2align 6\n" + descriptor(d2)
    open(OUT, "w").write(txt)
    print("wrote", OUT, "nops k1", a1.nops, "k2", a2.nops)


if __name__ == "__main__":
    main()
```

```python
import math, struct, sys, os
from asmlib import Asm

NAME = "standalone__gqa_block_cached__near_ridge"
STAMPS = int(os.environ.get("STAMPS", "0"))
LOOK = int(os.environ.get("LOOK", "2"))
NT_KV = os.environ.get("NT_KV", " nt")
NT_XW = os.environ.get("NT_XW", " nt")
K2U = int(os.environ.get("K2U", "2"))
OUT = os.environ.get("OUT", f"cdna_kernels/{NAME}.s")

WS_O = 0
WS_WO = 8 << 20
WS_STAMP = 16 << 20
WS_SIZE = 32 << 20
SLOT = 32768
NSLOT = 5


def f32hex(x):
    return "0x%08x" % struct.unpack("<I", struct.pack("<f", x))[0]


SC = math.log2(math.e) / math.sqrt(128.0)

HEADER = """; Kernarg layout for this problem (64 bytes, ptrs only, base s[0:1]):
"""


def vr(a, n=1):
    return f"v{a}" if n == 1 else f"v[{a}:{a + n - 1}]"


def ar(a, n=1):
    return f"a{a}" if n == 1 else f"a[{a}:{a + n - 1}]"


def sr(a, n=1):
    return f"s{a}" if n == 1 else f"s[{a}:{a + n - 1}]"


def srd(A, d, lo, hi, size):
    if lo != d:
        A(f"s_mov_b32 s{d}, s{lo}")
        A(f"s_mov_b32 s{d + 1}, s{hi}")
    if isinstance(size, int):
        A(f"s_mov_b32 s{d + 2}, {size}")
    else:
        A(f"s_mov_b32 s{d + 2}, {size}")
    A(f"s_mov_b32 s{d + 3}, 0x00020000")


class Stamper:
    def __init__(self, A, vt, sidx, stmp):
        self.A, self.vt, self.sidx, self.stmp = A, vt, sidx, stmp

    def init(self):
        if STAMPS:
            self.A(f"v_mov_b32 v{self.vt}, 0")
            self.A(f"s_mov_b32 s{self.sidx}, 0")

    def stamp(self, lvl=0):
        if STAMPS and not (STAMPS == 3 and lvl):
            A = self.A
            A(f"{'s_memrealtime' if STAMPS >= 2 else 's_memtime'} s[{self.stmp}:{self.stmp + 1}]")
            A.wait(lgkm=0)
            A(f"s_mov_b32 m0, s{self.sidx}")
            A("s_nop 0")
            A(f"v_writelane_b32 v{self.vt}, s{self.stmp}, m0")
            A(f"s_add_u32 s{self.sidx}, s{self.sidx}, 1")

    def flush(self, wssrd, s_wave, vlane, kern):
        if STAMPS:
            A = self.A
            A(f"s_lshl_b32 s{self.stmp}, s2, 3")
            A(f"s_add_u32 s{self.stmp}, s{self.stmp}, s{s_wave}")
            A(f"s_lshl_b32 s{self.stmp}, s{self.stmp}, 8")
            A(f"s_add_u32 s{self.stmp}, s{self.stmp}, {WS_STAMP + kern * (1 << 20)}")
            A(f"v_lshlrev_b32 v{self.vt + 1}, 2, v{vlane}")
            A(f"buffer_store_dword v{self.vt}, v{self.vt + 1}, s[{wssrd}:{wssrd + 3}], s{self.stmp} offen")


def interleave(A, mf, fill):
    for t in fill.get(-1, []):
        A(t)
    for i, m in enumerate(mf):
        A(m)
        for t in fill.get(i, []):
            A(t)


def spread(fill, ops, start, per, cost=None):
    s, acc = start, 0.0
    for o in ops:
        c = 2.0 if o.startswith("v_exp") else 1.0
        if acc + c > per + 1e-9 and acc > 0:
            s += 1
            acc = 0.0
        fill.setdefault(s, []).append(o)
        acc += c
    return s


def gen_k1():
    A = Asm()
    K = "k1_kernel"
    A.raw(f".globl {K}\n.p2align 8\n.type {K},@function\n{K}:")
    S_G, S_J, S_HS, S_B, S_HQ, S_WAVE = 20, 21, 22, 23, 24, 25
    X, KS, VS, WQ, WO, WS = 28, 32, 36, 40, 44, 48
    S_U, S_SLOT, S_KC, S_T0, S_T1, S_KOFF, S_VOFF, S_ROT = 52, 53, 54, 55, 56, 57, 58, 59
    S_CNT, S_C, S_IDX, S_TM = 60, 61, 62, 64
    A("s_cmp_ge_u32 s2, 256")
    A("s_cbranch_scc1 L1_end")
    A("s_load_dwordx16 s[4:19], s[0:1], 0")
    A("v_lshrrev_b32 v1, 6, v0")
    A(f"s_and_b32 s{S_G}, s2, 7")
    A(f"v_readfirstlane_b32 s{S_WAVE}, v1")
    A(f"s_lshr_b32 s{S_J}, s2, 3")
    A(f"s_and_b32 s{S_HS}, s{S_J}, 3")
    A(f"s_lshr_b32 s{S_B}, s{S_J}, 2")
    A(f"s_lshl_b32 s{S_HQ}, s{S_G}, 2")
    A(f"s_add_u32 s{S_HQ}, s{S_HQ}, s{S_HS}")
    A("v_and_b32 v0, 63, v0")
    ST = Stamper(A, 250, S_IDX, S_TM)
    ST.init()
    A(f"s_cmp_lg_u32 s{S_WAVE}, 0")
    A("s_cbranch_scc1 L1_compute")

    VX, VW, VK, VV, VO = 2, 6, 10, 14, 16
    T0, T1, T2, T3 = 40, 41, 42, 43
    A(f"v_lshrrev_b32 v{T0}, 4, v0")
    A(f"v_and_b32 v{T1}, 15, v0")
    A(f"v_lshrrev_b32 v{T2}, 3, v0")
    A(f"v_and_b32 v{T3}, 7, v0")
    A(f"v_mul_u32_u24 v{T2}, 1152, v{T2}")
    for m in range(2):
        A(f"v_add_u32 v{VX + m}, {4 * m}, v{T0}")
        A(f"v_xor_b32 v{VX + m}, v{VX + m}, v{T3}")
        A(f"v_lshl_add_u32 v{VX + m}, v{VX + m}, 4, v{T2}")
    A(f"v_add_u32 v{VX + 1}, 8192, v{VX + 1}")
    A(f"v_add_u32 v{VX + 2}, 16384, v{VX + 0}")
    A(f"v_add_u32 v{VX + 3}, 16384, v{VX + 1}")
    A(f"v_lshlrev_b32 v{T2}, 2, v{T0}")
    A(f"v_xor_b32 v{T2}, v{T2}, v{T1}")
    A(f"v_lshlrev_b32 v{T2}, 4, v{T2}")
    A(f"v_lshl_add_u32 v{VW}, v{T0}, 13, v{T2}")
    for m in range(1, 4):
        A(f"v_add_u32 v{VW + m}, {31744 * m}, v{VW}")
    A(f"v_lshl_add_u32 v{VV}, v{T0}, 8, v{T2}")
    for m in range(4):
        A(f"v_add_u32 v{VK + m}, {4 * m}, v{T0}")
        A(f"v_xor_b32 v{VK + m}, v{VK + m}, v{T1}")
        A(f"v_lshlrev_b32 v{VK + m}, 4, v{VK + m}")
        A(f"v_lshl_add_u32 v{VK + m}, v{T0}, 8, v{VK + m}")
    A(f"s_lshl_b32 s{S_KC}, s{S_HS}, 1")
    A(f"s_add_u32 s{S_KC}, s{S_KC}, s{S_B}")
    A(f"s_cmp_ge_u32 s{S_KC}, 9")
    A(f"s_cselect_b32 s{S_T0}, 9, 0")
    A(f"s_sub_u32 s{S_KC}, s{S_KC}, s{S_T0}")
    A(f"s_add_u32 s{S_ROT}, s{S_B}, s{S_G}")
    A(f"s_and_b32 s{S_ROT}, s{S_ROT}, 7")
    A(f"s_lshl_b32 s{S_KOFF}, s{S_ROT}, 14")
    A(f"s_mov_b32 s{S_VOFF}, s{S_KOFF}")
    A(f"s_mov_b32 s{S_U}, 0")
    A(f"s_mov_b32 s{S_SLOT}, 0")
    A.wait(lgkm=0)
    A(f"s_mul_i32 s{S_T0}, s{S_B}, 110592")
    A(f"s_add_u32 s{X}, s4, s{S_T0}")
    A(f"s_addc_u32 s{X + 1}, s5, 0")
    srd(A, X, X, X + 1, 110592)
    A(f"s_lshl_b32 s{S_T0}, s{S_HQ}, 8")
    A(f"s_add_u32 s{WQ}, s10, s{S_T0}")
    A(f"s_addc_u32 s{WQ + 1}, s11, 0")
    A(f"s_sub_u32 s{WQ + 2}, 4718592, s{S_T0}")
    A(f"s_mov_b32 s{WQ + 3}, 0x00020000")
    A(f"s_lshr_b32 s{S_T0}, s{S_HQ}, 1")
    A(f"s_lshl_b32 s{S_T1}, s{S_B}, 4")
    A(f"s_add_u32 s{S_T0}, s{S_T0}, s{S_T1}")
    A(f"s_lshl_b32 s{S_T0}, s{S_T0}, 17")
    A(f"s_add_u32 s{KS}, s6, s{S_T0}")
    A(f"s_addc_u32 s{KS + 1}, s7, 0")
    srd(A, KS, KS, KS + 1, 131072)
    A(f"s_add_u32 s{VS}, s8, s{S_T0}")
    A(f"s_addc_u32 s{VS + 1}, s9, 0")
    srd(A, VS, VS, VS + 1, 131072)
    srd(A, WO, 12, 13, 4718592)
    srd(A, WS, 18, 19, WS_SIZE)
    ST.stamp()

    sizes = [28] * 9 + [16] + [32] * 7 + [16] + [18]
    A.label("L1_ld_loop")
    A(f"s_cmp_lt_u32 s{S_U}, {LOOK}")
    A("s_cbranch_scc1 L1_ld_issue")
    cnts = {}
    for u in range(LOOK, 18 + LOOK):
        t = u - LOOK
        c = sum(sizes[i] for i in range(t + 1, u) if i < len(sizes))
        cnts[u] = min(c, 63)
    runs = []
    for u in sorted(cnts):
        if runs and runs[-1][2] == cnts[u]:
            runs[-1][1] = u
        else:
            runs.append([u, u, cnts[u]])
    for i, (u0, u1, c) in enumerate(runs):
        if i < len(runs) - 1:
            A(f"s_cmp_gt_u32 s{S_U}, {u1}")
            A(f"s_cbranch_scc1 L1_w{i + 1}")
            A.wait(vm=c)
            A("s_branch L1_ld_bar")
            A.label(f"L1_w{i + 1}")
        else:
            A.wait(vm=c)
    A.label("L1_ld_bar")
    ST.stamp()
    A("s_barrier")
    A.label("L1_ld_issue")
    A(f"s_cmp_gt_u32 s{S_U}, 8")
    A("s_cbranch_scc1 L1_ld_kv")
    A(f"s_lshl_b32 s{S_T0}, s{S_KC}, 7")
    A(f"s_lshl_b32 s{S_T1}, s{S_KC}, 19")
    order = [("w", 0), ("x", 0), ("w", 1), ("x", 1), ("w", 2), ("x", 2), ("w", 3)]
    for typ, gi in order:
        if typ == "x":
            A(f"s_add_u32 m0, s{S_SLOT}, {gi * 4096}")
            if gi:
                A(f"s_add_u32 s{S_T0}, s{S_T0}, 36864")
            for m in range(4):
                A(f"buffer_load_dwordx4 v{VX + m}, s[{X}:{X + 3}], s{S_T0} offen offset:{m * 1024}{NT_XW} lds")
        else:
            A(f"s_add_u32 m0, s{S_SLOT}, {12288 + gi * 4096}")
            if gi:
                A(f"s_add_u32 s{S_T1}, s{S_T1}, 131072")
            for m in range(4):
                A(f"buffer_load_dwordx4 v{VW + m}, s[{WQ}:{WQ + 3}], s{S_T1} offen offset:{m * 1024}{NT_XW} lds")
    A(f"s_add_u32 s{S_KC}, s{S_KC}, 1")
    A(f"s_cmp_eq_u32 s{S_KC}, 9")
    A(f"s_cselect_b32 s{S_KC}, 0, s{S_KC}")
    A("s_branch L1_ld_next")
    A.label("L1_ld_kv")
    A(f"s_cmp_gt_u32 s{S_U}, 16")
    A("s_cbranch_scc1 L1_ld_v")
    for gi in range(4):
        A(f"s_add_u32 m0, s{S_SLOT}, {gi * 4096}")
        A(f"s_add_u32 s{S_T0}, s{S_KOFF}, {gi * 4096}")
        for m in range(4):
            A(f"buffer_load_dwordx4 v{VK + m}, s[{KS}:{KS + 3}], s{S_T0} offen offset:{m * 1024}{NT_KV} lds")
    A(f"s_add_u32 s{S_KOFF}, s{S_KOFF}, 16384")
    A(f"s_and_b32 s{S_KOFF}, s{S_KOFF}, 0x1ffff")
    A(f"s_cmp_eq_u32 s{S_U}, 9")
    A("s_cbranch_scc1 L1_ld_next")
    A.label("L1_ld_v")
    A(f"s_cmp_gt_u32 s{S_U}, 17")
    A("s_cbranch_scc1 L1_ld_wo")
    for gi in range(4):
        A(f"s_add_u32 m0, s{S_SLOT}, {16384 + gi * 4096}")
        A(f"s_add_u32 s{S_T0}, s{S_VOFF}, {gi * 4096}")
        for m in range(4):
            A(f"buffer_load_dwordx4 v{VV}, s[{VS}:{VS + 3}], s{S_T0} offen offset:{m * 1024}{NT_KV} lds")
    A(f"s_add_u32 s{S_VOFF}, s{S_VOFF}, 16384")
    A(f"s_and_b32 s{S_VOFF}, s{S_VOFF}, 0x1ffff")
    A("s_branch L1_ld_next")
    A.label("L1_ld_wo")
    A(f"s_cmp_gt_u32 s{S_U}, 18")
    A("s_cbranch_scc1 L1_ld_next")
    WO_SLOT = (18 % NSLOT) * SLOT
    A(f"s_lshl_b32 s{S_T0}, s{S_G}, 4")
    A(f"s_lshr_b32 s{S_T1}, s{S_J}, 1")
    A(f"s_add_u32 s{S_KC}, s{S_T0}, s{S_T1}")
    A(f"s_mul_i32 s{S_T0}, s{S_KC}, {32 * 1152}")
    A(f"s_and_b32 s{S_ROT}, s{S_J}, 1")
    A(f"s_mul_i32 s{S_T1}, s{S_ROT}, 576")
    A(f"s_add_u32 s{S_T0}, s{S_T0}, s{S_T1}")
    A(f"v_lshlrev_b32 v{T1}, 4, v0")
    for i in range(18):
        A(f"v_add_u32 v{T0}, {64 * i}, v0")
        A(f"v_mul_u32_u24 v{T0}, 1821, v{T0}")
        A(f"v_lshrrev_b32 v{T0}, 16, v{T0}")
        A(f"v_mul_u32_u24 v{T0}, 576, v{T0}")
        A(f"v_add_u32 v{VO + i}, v{T0}, v{T1}")
        if i % 4 == 0:
            A(f"s_mov_b32 m0, {WO_SLOT + (i // 4) * 4096}")
            if i:
                A(f"s_add_u32 s{S_T0}, s{S_T0}, 4096")
        A(f"buffer_load_dwordx4 v{VO + i}, s[{WO}:{WO + 3}], s{S_T0} offen offset:{(i % 4) * 1024}{NT_XW} lds")
    A.label("L1_ld_next")
    A(f"s_add_u32 s{S_SLOT}, s{S_SLOT}, {SLOT}")
    A(f"s_cmp_eq_u32 s{S_SLOT}, {SLOT * NSLOT}")
    A(f"s_cselect_b32 s{S_SLOT}, 0, s{S_SLOT}")
    A(f"s_add_u32 s{S_U}, s{S_U}, 1")
    A(f"s_cmp_lt_u32 s{S_U}, {18 + LOOK}")
    A("s_cbranch_scc1 L1_ld_loop")
    A.vm = []
    A(f"v_lshrrev_b32 v{T0}, 5, v0")
    A(f"v_lshlrev_b32 v{T0}, 4, v{T0}")
    A(f"v_bfe_u32 v{T1}, v0, 4, 1")
    A(f"v_lshl_add_u32 v{T0}, v{T1}, 2, v{T0}")
    A(f"v_bfe_u32 v{T1}, v0, 2, 2")
    A(f"v_add_u32 v{T0}, v{T0}, v{T1}")
    A(f"v_mul_u32_u24 v{T0}, 576, v{T0}")
    A(f"v_and_b32 v{T1}, 3, v0")
    A(f"v_lshl_add_u32 v{T0}, v{T1}, 3, v{T0}")
    A(f"v_add_u32 v{T0}, {WO_SLOT}, v{T0}")
    A(f"v_lshlrev_b32 v{T1}, 4, v0")
    A(f"s_mul_i32 s{S_T0}, s{S_ROT}, {18 * 131072}")
    A(f"s_lshl_b32 s{S_T1}, s{S_KC}, 10")
    A(f"s_add_u32 s{S_T0}, s{S_T0}, s{S_T1}")
    A(f"s_add_u32 s{S_T0}, s{S_T0}, {WS_WO}")
    A.wait(vm=0)
    ST.stamp()
    RB = 64
    for cb in range(18):
        A(f"ds_read_b64_tr_b16 {vr(RB + 4 * cb, 2)}, v{T0} offset:{cb * 32}")
        A(f"ds_read_b64_tr_b16 {vr(RB + 4 * cb + 2, 2)}, v{T0} offset:{cb * 32 + 8 * 576}")
    for cb in range(18):
        A(f"buffer_store_dwordx4 {vr(RB + 4 * cb, 4)}, v{T1}, s[{WS}:{WS + 3}], s{S_T0} offen")
        A(f"s_add_u32 s{S_T0}, s{S_T0}, 131072")
    ST.stamp()
    ST.flush(WS, S_WAVE, 0, 0)
    A("s_endpgm")

    A.hist, A.vm, A.lgkm, A.smem_out = [], [], [{("s", i) for i in range(4, 20)}], True
    A.label("L1_compute")
    AD, AV = 2, 10
    BX, BW, BK, BV = 14, 15, 16, 17
    M, MC, AL, T0, T1, T2, T3 = 18, 19, 20, 21, 22, 23, 24
    ONES = 28
    QF, S, P, O, L = 32, 64, 96, 112, 176
    AK, AVF = 0, 64
    A(f"s_sub_u32 s{S_WAVE}, s{S_WAVE}, 1")
    A(f"v_and_b32 v{T0}, 31, v0")
    A(f"v_lshrrev_b32 v{T1}, 5, v0")
    A(f"v_bfe_u32 v{T2}, v0, 1, 3")
    A(f"v_xor_b32 v{T2}, v{T2}, v{T1}")
    A(f"v_lshlrev_b32 v{T2}, 4, v{T2}")
    A(f"v_lshl_add_u32 v{BX}, v{T0}, 7, v{T2}")
    A(f"s_lshl_b32 s{S_T0}, s{S_WAVE}, 12")
    A(f"v_add_u32 v{BX}, s{S_T0}, v{BX}")
    A(f"v_and_b32 v{T2}, 15, v0")
    A(f"v_xor_b32 v{T2}, v{T2}, v{T1}")
    A(f"v_lshlrev_b32 v{T2}, 4, v{T2}")
    A(f"v_lshl_add_u32 v{BK}, v{T0}, 8, v{T2}")
    A(f"v_bfe_u32 v{T0}, v0, 2, 2")
    A(f"v_mul_u32_u24 v{T0}, 320, v{T0}")
    A(f"v_bfe_u32 v{T2}, v0, 4, 1")
    A(f"v_lshl_add_u32 v{T0}, v{T2}, 5, v{T0}")
    A(f"v_and_b32 v{T2}, 3, v0")
    A(f"v_lshl_add_u32 v{BV}, v{T2}, 3, v{T0}")
    A(f"v_lshl_add_u32 v{BV}, v{T1}, 10, v{BV}")
    A(f"v_and_b32 v{T2}, 1, v0")
    A(f"v_lshl_add_u32 v{BW}, v{T2}, 4, v{T0}")
    A(f"v_bfe_u32 v{T2}, v0, 1, 1")
    A(f"v_lshl_add_u32 v{BW}, v{T2}, 3, v{BW}")
    A(f"v_lshl_add_u32 v{BW}, v{T1}, 11, v{BW}")
    for i in range(64):
        A(f"v_mov_b32 v{O + i}, 0")
    for i in range(4):
        A(f"v_mov_b32 v{ONES + i}, 0x3f803f80")
    A(f"s_mov_b32 s{S_SLOT}, 0")
    A(f"s_mov_b32 s{S_CNT}, 0")
    A(f"s_mov_b32 s{S_C}, {f32hex(SC)}")
    A.wait(lgkm=0)
    srd(A, WS, 18, 19, WS_SIZE)
    ST.stamp()

    def next_slot():
        return [f"s_add_u32 s{S_SLOT}, s{S_SLOT}, {SLOT}",
                f"s_cmp_eq_u32 s{S_SLOT}, {SLOT * NSLOT}",
                f"s_cselect_b32 s{S_SLOT}, 0, s{S_SLOT}"]

    def addr_ops(base, dst, n, step):
        ops = [f"v_add_u32 v{dst}, s{S_SLOT}, v{base}"]
        for i in range(1, n):
            ops.append(f"v_xor_b32 v{dst + i}, {i * step}, v{dst}")
        return ops

    MF = "v_mfma_f32_32x32x16_bf16"
    for t in addr_ops(BX, AD, 4, 32) + addr_ops(BW, AV, 4, 64):
        A(t)
    A.label("L1_xw")
    A("s_barrier")
    ST.stamp(1)
    reads = []
    for ks in range(4):
        reads.append(f"ds_read_b128 {ar(AVF + 4 * ks, 4)}, v{AD + ks}")
        for dt in range(4):
            f = AK + 4 * (4 * ks + dt)
            reads.append(f"ds_read_b64_tr_b16 {ar(f, 2)}, v{AV + dt} offset:{12288 + ks * 4096}")
            reads.append(f"ds_read_b64_tr_b16 {ar(f + 2, 2)}, v{AV + dt} offset:{12288 + ks * 4096 + 1024}")
    mf = [f"{MF} {vr(O + 16 * dt, 16)}, {ar(AK + 4 * (4 * ks + dt), 4)}, {ar(AVF + 4 * ks, 4)}, {vr(O + 16 * dt, 16)}"
          for ks in range(4) for dt in range(4)]
    fill = {-1: reads[:14]}
    last = spread(fill, reads[14:], 0, 3)
    tail = next_slot() + addr_ops(BX, AD, 4, 32) + addr_ops(BW, AV, 4, 64) + [f"s_add_u32 s{S_CNT}, s{S_CNT}, 1"]
    spread(fill, tail, last + 1, 3)
    interleave(A, mf, fill)
    A(f"s_cmp_lt_u32 s{S_CNT}, 9")
    A("s_cbranch_scc1 L1_xw")
    A.check_loop("L1_xw")
    for t in addr_ops(BK, AD, 8, 32):
        A(t)
    for i in range(32):
        A(f"v_cvt_pk_bf16_f32 v{QF + i}, v{O + 2 * i}, v{O + 2 * i + 1}")
    for i in range(64):
        A(f"v_mov_b32 v{O + i}, 0")
    for i in range(16):
        A(f"v_mov_b32 v{L + i}, 0")

    def k_reads():
        return [f"ds_read_b128 {ar(AK + 4 * (8 * kt + ks), 4)}, v{AD + ks} offset:{kt * 8192}"
                for kt in range(2) for ks in range(8)]

    def v_reads(dt_outer=False):
        r = []
        it = [(tp, dt) for tp in range(4) for dt in range(4)]
        if dt_outer:
            it = [(tp, dt) for dt in range(4) for tp in range(4)]
        for tp, dt in it:
            f = AVF + 4 * (4 * tp + dt)
            r.append(f"ds_read_b64_tr_b16 {ar(f, 2)}, v{AV + dt} offset:{16384 + tp * 4096}")
            r.append(f"ds_read_b64_tr_b16 {ar(f + 2, 2)}, v{AV + dt} offset:{16384 + tp * 4096 + 2048}")
        return r

    def qk_mf():
        return [f"{MF} {vr(S + 16 * kt, 16)}, {ar(AK + 4 * (8 * kt + ks), 4)}, {vr(QF + 4 * ks, 4)}, "
                + ("0" if ks == 0 else vr(S + 16 * kt, 16)) for kt in range(2) for ks in range(8)]

    def pv(tp, dt):
        return f"{MF} {vr(O + 16 * dt, 16)}, {ar(AVF + 4 * (4 * tp + dt), 4)}, {vr(P + 4 * tp, 4)}, {vr(O + 16 * dt, 16)}"

    def lm(tp):
        return f"{MF} {vr(L, 16)}, {vr(ONES, 4)}, {vr(P + 4 * tp, 4)}, {vr(L, 16)}"

    def max_ops(kt, first):
        b = S + 16 * kt
        ops = []
        if kt == 0:
            if first:
                ops.append(f"v_max_f32 v{T0}, v{b}, v{b + 1}")
            else:
                ops.append(f"v_max3_f32 v{T0}, v{b}, v{b + 1}, v{M}")
            ops.append(f"v_max_f32 v{T1}, v{b + 2}, v{b + 3}")
            rest = range(4, 16, 2)
        else:
            rest = range(0, 16, 2)
        for n, i in enumerate(rest):
            t = T0 if n % 2 == 0 else T1
            ops.append(f"v_max3_f32 v{t}, v{b + i}, v{b + i + 1}, v{t}")
        return ops

    def max_fin(first):
        ops = [f"v_max_f32 v{T0}, v{T0}, v{T1}",
               f"v_mov_b32 v{T1}, v{T0}",
               f"v_permlane32_swap_b32 v{T0}, v{T1}",
               f"v_max_f32 v{M}, v{T0}, v{T1}"]
        if first:
            ops += [f"v_mul_f32 v{MC}, s{S_C}, v{M}", f"v_mov_b32 v{AL}, 1.0"]
        else:
            ops += [f"v_mov_b32 v{T2}, v{MC}",
                    f"v_mul_f32 v{MC}, s{S_C}, v{M}",
                    f"v_sub_f32 v{T2}, v{T2}, v{MC}",
                    f"v_exp_f32 v{AL}, v{T2}"]
        return ops

    def p_chunk(tp):
        b = S + 8 * tp
        ops = []
        for i in range(8):
            ops.append(f"v_fma_f32 v{b + i}, v{b + i}, s{S_C}, -v{MC}")
        for i in range(8):
            ops.append(f"v_exp_f32 v{b + i}, v{b + i}")
        return ops, [f"v_cvt_pk_bf16_f32 v{P + 4 * tp + i}, v{b + 2 * i}, v{b + 2 * i + 1}" for i in range(4)]

    def rescale():
        return [f"v_mul_f32 v{L}, v{AL}, v{L}"] + [f"v_mul_f32 v{O + i}, v{AL}, v{O + i}" for i in range(64)]

    A("s_barrier")
    ST.stamp()
    kr = k_reads()
    fill = {-1: kr[:10]}
    last = spread(fill, kr[10:], 0, 2)
    spread(fill, next_slot() + addr_ops(BK, AD, 8, 32) + addr_ops(BV, AV, 4, 64), last + 1, 4)
    spread(fill, max_ops(0, True), 11, 2)
    interleave(A, qk_mf(), fill)
    for t in max_ops(1, True) + max_fin(True):
        A(t)
    for tp in range(4):
        a, b = p_chunk(tp)
        for t in a + b:
            A(t)
    A(f"s_mov_b32 s{S_CNT}, 0")
    A.label("L1_kv")
    A("s_barrier")
    ST.stamp()
    kr, vrd, rs = k_reads(), v_reads(), rescale()
    mf = qk_mf()
    for tp in range(4):
        mf += [pv(tp, dt) for dt in range(4)] + [lm(tp)]
    fill = {-1: kr[:8] + rs[:12] + kr[8:12] + rs[12:24]}
    spread(fill, kr[12:] + vrd, 0, 2)
    spread(fill, rs[24:], 0, 4)
    spread(fill, max_ops(0, False), 11, 2)
    last = spread(fill, max_ops(1, False) + max_fin(False), 18, 6)
    s0 = last + 1
    for tp in range(4):
        a, b = p_chunk(tp)
        last = spread(fill, a, s0, 6)
        last = max(last, 20 + 5 * tp)
        last = spread(fill, b, last, 100)
        s0 = last + 1
    tail = next_slot() + addr_ops(BK, AD, 8, 32) + addr_ops(BV, AV, 4, 64) + [f"s_add_u32 s{S_CNT}, s{S_CNT}, 1"]
    over = {k: v for k, v in fill.items() if k >= len(mf)}
    for k in over:
        del fill[k]
    interleave(A, mf, fill)
    for k in sorted(over):
        for t in over[k]:
            A(t)
    for t in tail:
        A(t)
    A(f"s_cmp_lt_u32 s{S_CNT}, 7")
    A("s_cbranch_scc1 L1_kv")
    A.check_loop("L1_kv")
    rs = rescale()
    fill = {-1: rs[:1]}
    spread(fill, rs[1:], 0, 16)
    interleave(A, [lm(tp) for tp in range(4)], fill)
    A(f"v_bfe_u32 v{T0}, v0, 4, 1")
    A(f"v_lshlrev_b32 v{T0}, 17, v{T0}")
    A(f"v_lshrrev_b32 v{T1}, 5, v0")
    A(f"v_lshl_add_u32 v{T0}, v{T1}, 8, v{T0}")
    A(f"v_and_b32 v{T1}, 15, v0")
    A(f"v_lshl_add_u32 v{T0}, v{T1}, 4, v{T0}")
    A(f"s_mul_i32 s{S_T0}, s{S_B}, 6")
    A(f"s_lshl_b32 s{S_T1}, s{S_WAVE}, 1")
    A(f"s_add_u32 s{S_T0}, s{S_T0}, s{S_T1}")
    A(f"s_lshl_b32 s{S_T0}, s{S_T0}, 17")
    A(f"s_lshl_b32 s{S_T1}, s{S_HQ}, 12")
    A(f"s_add_u32 s{S_T0}, s{S_T0}, s{S_T1}")
    if WS_O:
        A(f"s_add_u32 s{S_T0}, s{S_T0}, {WS_O}")
    A(f"v_rcp_f32 v{AL}, v{L}")
    A("s_barrier")
    ST.stamp()
    vrd = v_reads(True)
    mf = [pv(tp, dt) for dt in range(4) for tp in range(4)]
    fill = {-1: vrd[:14]}
    spread(fill, vrd[14:], 0, 3)

    def fin(dt):
        ops = []
        for t in range(2):
            b = O + 16 * dt + 8 * t
            for i in range(8):
                ops.append(f"v_mul_f32 v{b + i}, v{AL}, v{b + i}")
            d = S + 8 * dt + 4 * t
            for i in range(4):
                ops.append(f"v_cvt_pk_bf16_f32 v{d + i}, v{b + 2 * i}, v{b + 2 * i + 1}")
            ops.append(f"buffer_store_dwordx4 {vr(d, 4)}, v{T0}, s[{WS}:{WS + 3}], s{S_T0} offen offset:{dt * 1024 + t * 512}")
        return ops
    for dt in range(3):
        spread(fill, fin(dt), 4 * dt + 6, 7)
    over = {k: v for k, v in fill.items() if k >= len(mf)}
    for k in over:
        del fill[k]
    interleave(A, mf, fill)
    for k in sorted(over):
        for t in over[k]:
            A(t)
    for t in fin(3):
        A(t)
    ST.stamp()
    A(f"s_add_u32 s{S_WAVE}, s{S_WAVE}, 1")
    ST.flush(WS, S_WAVE, 0, 0)
    if STAMPS == 3:
        A("s_cmp_lg_u32 s2, 0")
        A("s_cbranch_scc1 L1_end")
        A(f"s_cmp_lg_u32 s{S_WAVE}, 1")
        A("s_cbranch_scc1 L1_end")
        srd(A, X, 16, 17, 256)
        A(f"buffer_store_dword v250, v251, s[{X}:{X + 3}], 0 offen")
    A.label("L1_end")
    A("s_endpgm")
    desc = dict(name=K, vgpr=(256 + 128 if STAMPS else 192 + 128), accum=(256 if STAMPS else 192), sgpr=72)
    return A, desc


def gen_k2():
    A = Asm()
    K = "k2_kernel"
    U = K2U
    A.raw(f".globl {K}\n.p2align 8\n.type {K},@function\n{K}:")
    S_G, S_J, S_RG, S_CG, S_WAVE, S_T0, S_T1, S_KO, S_CNT, S_BASE = 20, 21, 22, 23, 24, 25, 26, 27, 36, 37
    WS, OS = 28, 32
    S_IDX, S_TM = 38, 40
    VA = 2
    T0, T1 = 8, 9
    ACC = 12
    FR = 48
    A("s_cmp_ge_u32 s2, 192")
    A("s_cbranch_scc1 L2_end")
    A("s_load_dwordx4 s[4:7], s[0:1], 48")
    A("s_load_dwordx2 s[8:9], s[0:1], 40")
    A("v_lshrrev_b32 v1, 6, v0")
    A(f"s_and_b32 s{S_G}, s2, 7")
    A(f"v_readfirstlane_b32 s{S_WAVE}, v1")
    A("v_and_b32 v0, 63, v0")
    ST = Stamper(A, 250, S_IDX, S_TM)
    ST.init()
    A(f"s_lshr_b32 s{S_J}, s2, 3")
    A(f"s_lshr_b32 s{S_T0}, s{S_G}, 1")
    A(f"s_lshl_b32 s{S_T0}, s{S_T0}, 2")
    A(f"s_and_b32 s{S_T1}, s{S_J}, 3")
    A(f"s_add_u32 s{S_RG}, s{S_T0}, s{S_T1}")
    A(f"s_lshl_b32 s{S_KO}, s{S_T1}, 1")
    A(f"s_and_b32 s{S_T0}, s{S_G}, 1")
    A(f"s_mul_i32 s{S_T0}, s{S_T0}, 6")
    A(f"s_lshr_b32 s{S_T1}, s{S_J}, 2")
    A(f"s_add_u32 s{S_CG}, s{S_T0}, s{S_T1}")
    A(f"s_add_u32 s{S_KO}, s{S_KO}, s{S_T1}")
    A(f"s_and_b32 s{S_KO}, s{S_KO}, 7")
    A(f"s_lshl_b32 s{S_KO}, s{S_KO}, 12")
    A(f"s_lshl_b32 s{S_BASE}, s{S_WAVE}, 15")
    A(f"v_lshlrev_b32 v{T0}, 4, v0")
    A(f"s_mul_i32 s{S_T0}, s{S_CG}, {3 * 131072}")
    A(f"s_add_u32 s{S_T0}, s{S_T0}, {WS_WO}")
    A(f"s_add_u32 s{S_T0}, s{S_T0}, s{S_BASE}")
    A(f"v_add_u32 v{VA}, s{S_T0}, v{T0}")
    A(f"v_add_u32 v{VA + 1}, 131072, v{VA}")
    A(f"v_add_u32 v{VA + 2}, 262144, v{VA}")
    A(f"s_mul_i32 s{S_T0}, s{S_RG}, {3 * 131072}")
    if WS_O:
        A(f"s_add_u32 s{S_T0}, s{S_T0}, {WS_O}")
    A(f"s_add_u32 s{S_T0}, s{S_T0}, s{S_BASE}")
    A(f"v_add_u32 v{VA + 3}, s{S_T0}, v{T0}")
    A(f"v_add_u32 v{VA + 4}, 131072, v{VA + 3}")
    A(f"v_add_u32 v{VA + 5}, 262144, v{VA + 3}")
    for i in range(36):
        A(f"v_mov_b32 v{ACC + i}, 0")
    A(f"s_mov_b32 s{S_CNT}, 0")
    A.wait(lgkm=0)
    srd(A, WS, 6, 7, WS_SIZE)
    srd(A, OS, 8, 9, 884736)
    ST.stamp()

    def loads(m):
        return [f"buffer_load_dwordx4 {vr(FR + 24 * m + 4 * i, 4)}, v{VA + i}, s[{WS}:{WS + 3}], s{S_KO} offen offset:{m * 1024}"
                for i in (0, 3, 4, 5, 1, 2)]

    def mfs(m):
        return [f"v_mfma_f32_16x16x32_bf16 {vr(ACC + 4 * (3 * a + b), 4)}, {vr(FR + 24 * m + 4 * a, 4)}, "
                f"{vr(FR + 24 * m + 12 + 4 * b, 4)}, {vr(ACC + 4 * (3 * a + b), 4)}" for a in range(3) for b in range(3)]

    def adv():
        A(f"s_add_u32 s{S_KO}, s{S_KO}, {1024 * U}")
        A(f"s_and_b32 s{S_KO}, s{S_KO}, 0x7fff")
    for m in range(U):
        for t in loads(m):
            A(t)
    adv()
    state0 = [set(x) for x in A.vm]
    A.label("L2_loop")
    for m in range(U):
        for t in mfs(m):
            A(t)
        for t in loads(m):
            A(t)
    adv()
    A(f"s_add_u32 s{S_CNT}, s{S_CNT}, 1")
    A(f"s_cmp_lt_u32 s{S_CNT}, {32 // U - 1}")
    A("s_cbranch_scc1 L2_loop")
    A.check_loop("L2_loop")
    assert [set(x) for x in A.vm] == state0, (A.vm, state0)
    for m in range(U):
        for t in mfs(m):
            A(t)
    ST.stamp()
    A(f"s_mul_i32 s{S_T0}, s{S_WAVE}, 9216")
    A(f"v_add_u32 v{T1}, s{S_T0}, v{T0}")
    for i in range(9):
        A(f"ds_write_b128 v{T1}, {vr(ACC + 4 * i, 4)} offset:{i * 1024}")
    A(f"v_and_b32 v{VA}, 15, v0")
    A(f"v_mul_u32_u24 v{VA}, 1152, v{VA}")
    A(f"v_lshrrev_b32 v{VA + 1}, 4, v0")
    A(f"v_lshl_add_u32 v{VA}, v{VA + 1}, 3, v{VA}")
    A(f"s_mul_i32 s{S_T0}, s{S_RG}, {48 * 1152}")
    A(f"s_mul_i32 s{S_T1}, s{S_CG}, 96")
    A(f"s_add_u32 s{S_BASE}, s{S_T0}, s{S_T1}")
    A(f"s_lshl_b32 s{S_T0}, s{S_WAVE}, 10")
    A(f"v_add_u32 v{T1}, s{S_T0}, v{T0}")
    A.wait(lgkm=0)
    A("s_barrier")
    for rep in range(3):
        if rep == 2:
            A(f"s_cmp_lg_u32 s{S_WAVE}, 0")
            A("s_cbranch_scc1 L2_done")
        for w in range(4):
            A(f"ds_read_b128 {vr(FR + 16 * rep + 4 * w, 4)}, v{T1} offset:{w * 9216 + rep * 4096}")
        A(f"s_add_u32 s{S_T0}, s{S_WAVE}, {4 * rep}")
        A(f"s_mul_i32 s{S_T1}, s{S_T0}, 11")
        A(f"s_lshr_b32 s{S_T1}, s{S_T1}, 5")
        A(f"s_mul_i32 s{S_KO}, s{S_T1}, 3")
        A(f"s_sub_u32 s{S_T0}, s{S_T0}, s{S_KO}")
        A(f"s_mul_i32 s{S_T0}, s{S_T0}, {16 * 1152}")
        A(f"s_lshl_b32 s{S_T1}, s{S_T1}, 5")
        A(f"s_add_u32 s{S_T0}, s{S_T0}, s{S_T1}")
        A(f"s_add_u32 s{S_T0}, s{S_T0}, s{S_BASE}")
        b = FR + 16 * rep
        for r in range(4):
            A(f"v_add_f32 v{b + r}, v{b + r}, v{b + 4 + r}")
            A(f"v_add_f32 v{b + 8 + r}, v{b + 8 + r}, v{b + 12 + r}")
        for r in range(4):
            A(f"v_add_f32 v{b + r}, v{b + r}, v{b + 8 + r}")
        A(f"v_cvt_pk_bf16_f32 v{b}, v{b}, v{b + 1}")
        A(f"v_cvt_pk_bf16_f32 v{b + 1}, v{b + 2}, v{b + 3}")
        A(f"buffer_store_dwordx2 {vr(b, 2)}, v{VA}, s[{OS}:{OS + 3}], s{S_T0} offen")
    A.label("L2_done")
    ST.stamp()
    ST.flush(WS, S_WAVE, 0, 1)
    A.label("L2_end")
    A("s_endpgm")
    nv = max(FR + 24 * U, FR + 48)
    nv = 256 if STAMPS else (nv + 3) // 4 * 4
    desc = dict(name=K, vgpr=nv, accum=nv, sgpr=48)
    return A, desc


def descriptor(d):
    return f""".amdhsa_kernel {d['name']}
  .amdhsa_next_free_vgpr {d['vgpr']}
  .amdhsa_next_free_sgpr {d['sgpr']}
  .amdhsa_accum_offset {d['accum']}
  .amdhsa_group_segment_fixed_size 0
  .amdhsa_kernarg_size 64
  .amdhsa_user_sgpr_count 2
  .amdhsa_user_sgpr_kernarg_segment_ptr 1
  .amdhsa_system_sgpr_workgroup_id_x 1
.end_amdhsa_kernel
"""


def main():
    a1, d1 = gen_k1()
    a2, d2 = gen_k2()
    txt = HEADER
    txt += "; @launch kernel=k1_kernel grid=(256,1,1) block=(256,1,1) lds=163840\n"
    txt += "; @launch kernel=k2_kernel grid=(192,1,1) block=(256,1,1) lds=36864\n"
    for _ in range(int(os.environ.get("EXTRA", "0"))):
        txt += "; @launch kernel=k3_kernel grid=(256,1,1) block=(256,1,1) lds=0\n"
    txt += '.amdgcn_target "amdgcn-amd-amdhsa--gfx950"\n.text\n'
    txt += a1.text() + a2.text()
    if os.environ.get("EXTRA"):
        txt += ".globl k3_kernel\n.p2align 8\n.type k3_kernel,@function\nk3_kernel:\n    s_endpgm\n"
    txt += '.section .rodata,"a"\n.p2align 6\n' + descriptor(d1) + ".p2align 6\n" + descriptor(d2)
    if os.environ.get("EXTRA"):
        txt += ".p2align 6\n" + descriptor(dict(name="k3_kernel", vgpr=8, accum=8, sgpr=16))
    open(OUT, "w").write(txt)
    print("wrote", OUT, "nops k1", a1.nops, "k2", a2.nops)


if __name__ == "__main__":
    main()
```

```python
import math, struct, sys, os
from asmlib import Asm

NAME = "standalone__gqa_block_cached__near_ridge"
STAMPS = int(os.environ.get("STAMPS", "0"))
LOOK = int(os.environ.get("LOOK", "2"))
NT_KV = os.environ.get("NT_KV", " nt")
NT_XW = os.environ.get("NT_XW", " nt")
K2U = int(os.environ.get("K2U", "2"))
OUT = os.environ.get("OUT", f"cdna_kernels/{NAME}.s")

WS_O = 0
WS_WO = 8 << 20
WS_STAMP = 16 << 20
WS_SIZE = 32 << 20
SLOT = 32768
NSLOT = 5


def f32hex(x):
    return "0x%08x" % struct.unpack("<I", struct.pack("<f", x))[0]


SC = math.log2(math.e) / math.sqrt(128.0)

HEADER = """; Kernarg layout for this problem (64 bytes, ptrs only, base s[0:1]):
"""


def vr(a, n=1):
    return f"v{a}" if n == 1 else f"v[{a}:{a + n - 1}]"


def ar(a, n=1):
    return f"a{a}" if n == 1 else f"a[{a}:{a + n - 1}]"


def sr(a, n=1):
    return f"s{a}" if n == 1 else f"s[{a}:{a + n - 1}]"


def srd(A, d, lo, hi, size):
    if lo != d:
        A(f"s_mov_b32 s{d}, s{lo}")
        A(f"s_mov_b32 s{d + 1}, s{hi}")
    if isinstance(size, int):
        A(f"s_mov_b32 s{d + 2}, {size}")
    else:
        A(f"s_mov_b32 s{d + 2}, {size}")
    A(f"s_mov_b32 s{d + 3}, 0x00020000")


class Stamper:
    def __init__(self, A, vt, sidx, stmp):
        self.A, self.vt, self.sidx, self.stmp = A, vt, sidx, stmp

    def init(self):
        if STAMPS:
            self.A(f"v_mov_b32 v{self.vt}, 0")
            self.A(f"s_mov_b32 s{self.sidx}, 0")

    def stamp(self, lvl=0):
        if STAMPS and not (STAMPS == 3 and lvl):
            A = self.A
            A(f"{'s_memrealtime' if STAMPS >= 2 else 's_memtime'} s[{self.stmp}:{self.stmp + 1}]")
            A.wait(lgkm=0)
            A(f"s_mov_b32 m0, s{self.sidx}")
            A("s_nop 0")
            A(f"v_writelane_b32 v{self.vt}, s{self.stmp}, m0")
            A(f"s_add_u32 s{self.sidx}, s{self.sidx}, 1")

    def flush(self, wssrd, s_wave, vlane, kern):
        if STAMPS:
            A = self.A
            A(f"s_lshl_b32 s{self.stmp}, s2, 3")
            A(f"s_add_u32 s{self.stmp}, s{self.stmp}, s{s_wave}")
            A(f"s_lshl_b32 s{self.stmp}, s{self.stmp}, 8")
            A(f"s_add_u32 s{self.stmp}, s{self.stmp}, {WS_STAMP + kern * (1 << 20)}")
            A(f"v_lshlrev_b32 v{self.vt + 1}, 2, v{vlane}")
            A(f"buffer_store_dword v{self.vt}, v{self.vt + 1}, s[{wssrd}:{wssrd + 3}], s{self.stmp} offen")


def interleave(A, mf, fill):
    for t in fill.get(-1, []):
        A(t)
    for i, m in enumerate(mf):
        A(m)
        for t in fill.get(i, []):
            A(t)


def spread(fill, ops, start, per, cost=None):
    s, acc = start, 0.0
    for o in ops:
        c = 2.0 if o.startswith("v_exp") else 1.0
        if acc + c > per + 1e-9 and acc > 0:
            s += 1
            acc = 0.0
        fill.setdefault(s, []).append(o)
        acc += c
    return s


def gen_k1():
    A = Asm()
    K = "k1_kernel"
    A.raw(f".globl {K}\n.p2align 8\n.type {K},@function\n{K}:")
    S_G, S_J, S_HS, S_B, S_HQ, S_WAVE = 20, 21, 22, 23, 24, 25
    X, KS, VS, WQ, WO, WS = 28, 32, 36, 40, 44, 48
    S_U, S_SLOT, S_KC, S_T0, S_T1, S_KOFF, S_VOFF, S_ROT = 52, 53, 54, 55, 56, 57, 58, 59
    S_CNT, S_C, S_IDX, S_TM = 60, 61, 62, 64
    A("s_cmp_ge_u32 s2, 256")
    A("s_cbranch_scc1 L1_end")
    A("s_load_dwordx16 s[4:19], s[0:1], 0")
    A("v_lshrrev_b32 v1, 6, v0")
    A(f"s_and_b32 s{S_G}, s2, 7")
    A(f"v_readfirstlane_b32 s{S_WAVE}, v1")
    A(f"s_lshr_b32 s{S_J}, s2, 3")
    A(f"s_and_b32 s{S_HS}, s{S_J}, 3")
    A(f"s_lshr_b32 s{S_B}, s{S_J}, 2")
    A(f"s_lshl_b32 s{S_HQ}, s{S_G}, 2")
    A(f"s_add_u32 s{S_HQ}, s{S_HQ}, s{S_HS}")
    A("v_and_b32 v0, 63, v0")
    ST = Stamper(A, 250, S_IDX, S_TM)
    ST.init()
    A(f"s_cmp_lg_u32 s{S_WAVE}, 0")
    A("s_cbranch_scc1 L1_compute")

    VX, VW, VK, VV, VO = 2, 6, 10, 14, 16
    T0, T1, T2, T3 = 40, 41, 42, 43
    A(f"v_lshrrev_b32 v{T0}, 4, v0")
    A(f"v_and_b32 v{T1}, 15, v0")
    A(f"v_lshrrev_b32 v{T2}, 3, v0")
    A(f"v_and_b32 v{T3}, 7, v0")
    A(f"v_mul_u32_u24 v{T2}, 1152, v{T2}")
    for m in range(2):
        A(f"v_add_u32 v{VX + m}, {4 * m}, v{T0}")
        A(f"v_xor_b32 v{VX + m}, v{VX + m}, v{T3}")
        A(f"v_lshl_add_u32 v{VX + m}, v{VX + m}, 4, v{T2}")
    A(f"v_add_u32 v{VX + 1}, 8192, v{VX + 1}")
    A(f"v_add_u32 v{VX + 2}, 16384, v{VX + 0}")
    A(f"v_add_u32 v{VX + 3}, 16384, v{VX + 1}")
    A(f"v_lshlrev_b32 v{T2}, 2, v{T0}")
    A(f"v_xor_b32 v{T2}, v{T2}, v{T1}")
    A(f"v_lshlrev_b32 v{T2}, 4, v{T2}")
    A(f"v_lshl_add_u32 v{VW}, v{T0}, 13, v{T2}")
    for m in range(1, 4):
        A(f"v_add_u32 v{VW + m}, {31744 * m}, v{VW}")
    A(f"v_lshl_add_u32 v{VV}, v{T0}, 8, v{T2}")
    for m in range(4):
        A(f"v_add_u32 v{VK + m}, {4 * m}, v{T0}")
        A(f"v_xor_b32 v{VK + m}, v{VK + m}, v{T1}")
        A(f"v_lshlrev_b32 v{VK + m}, 4, v{VK + m}")
        A(f"v_lshl_add_u32 v{VK + m}, v{T0}, 8, v{VK + m}")
    A(f"s_lshl_b32 s{S_KC}, s{S_HS}, 1")
    A(f"s_add_u32 s{S_KC}, s{S_KC}, s{S_B}")
    A(f"s_cmp_ge_u32 s{S_KC}, 9")
    A(f"s_cselect_b32 s{S_T0}, 9, 0")
    A(f"s_sub_u32 s{S_KC}, s{S_KC}, s{S_T0}")
    A(f"s_add_u32 s{S_ROT}, s{S_B}, s{S_G}")
    A(f"s_and_b32 s{S_ROT}, s{S_ROT}, 7")
    A(f"s_lshl_b32 s{S_KOFF}, s{S_ROT}, 14")
    A(f"s_mov_b32 s{S_VOFF}, s{S_KOFF}")
    A(f"s_mov_b32 s{S_U}, 0")
    A(f"s_mov_b32 s{S_SLOT}, 0")
    A.wait(lgkm=0)
    A(f"s_mul_i32 s{S_T0}, s{S_B}, 110592")
    A(f"s_add_u32 s{X}, s4, s{S_T0}")
    A(f"s_addc_u32 s{X + 1}, s5, 0")
    srd(A, X, X, X + 1, 110592)
    A(f"s_lshl_b32 s{S_T0}, s{S_HQ}, 8")
    A(f"s_add_u32 s{WQ}, s10, s{S_T0}")
    A(f"s_addc_u32 s{WQ + 1}, s11, 0")
    A(f"s_sub_u32 s{WQ + 2}, 4718592, s{S_T0}")
    A(f"s_mov_b32 s{WQ + 3}, 0x00020000")
    A(f"s_lshr_b32 s{S_T0}, s{S_HQ}, 1")
    A(f"s_lshl_b32 s{S_T1}, s{S_B}, 4")
    A(f"s_add_u32 s{S_T0}, s{S_T0}, s{S_T1}")
    A(f"s_lshl_b32 s{S_T0}, s{S_T0}, 17")
    A(f"s_add_u32 s{KS}, s6, s{S_T0}")
    A(f"s_addc_u32 s{KS + 1}, s7, 0")
    srd(A, KS, KS, KS + 1, 131072)
    A(f"s_add_u32 s{VS}, s8, s{S_T0}")
    A(f"s_addc_u32 s{VS + 1}, s9, 0")
    srd(A, VS, VS, VS + 1, 131072)
    srd(A, WO, 12, 13, 4718592)
    srd(A, WS, 18, 19, WS_SIZE)
    ST.stamp()

    sizes = [28] * 9 + [16] + [32] * 7 + [16] + [18]
    A.label("L1_ld_loop")
    A(f"s_cmp_lt_u32 s{S_U}, {LOOK}")
    A("s_cbranch_scc1 L1_ld_issue")
    cnts = {}
    for u in range(LOOK, 18 + LOOK):
        t = u - LOOK
        c = sum(sizes[i] for i in range(t + 1, u) if i < len(sizes))
        cnts[u] = min(c, 63)
    runs = []
    for u in sorted(cnts):
        if runs and runs[-1][2] == cnts[u]:
            runs[-1][1] = u
        else:
            runs.append([u, u, cnts[u]])
    for i, (u0, u1, c) in enumerate(runs):
        if i < len(runs) - 1:
            A(f"s_cmp_gt_u32 s{S_U}, {u1}")
            A(f"s_cbranch_scc1 L1_w{i + 1}")
            A.wait(vm=c)
            A("s_branch L1_ld_bar")
            A.label(f"L1_w{i + 1}")
        else:
            A.wait(vm=c)
    A.label("L1_ld_bar")
    ST.stamp()
    A("s_barrier")
    A.label("L1_ld_issue")
    A(f"s_cmp_gt_u32 s{S_U}, 8")
    A("s_cbranch_scc1 L1_ld_kv")
    A(f"s_lshl_b32 s{S_T0}, s{S_KC}, 7")
    A(f"s_lshl_b32 s{S_T1}, s{S_KC}, 19")
    order = [("w", 0), ("x", 0), ("w", 1), ("x", 1), ("w", 2), ("x", 2), ("w", 3)]
    for typ, gi in order:
        if typ == "x":
            A(f"s_add_u32 m0, s{S_SLOT}, {gi * 4096}")
            if gi:
                A(f"s_add_u32 s{S_T0}, s{S_T0}, 36864")
            for m in range(4):
                A(f"buffer_load_dwordx4 v{VX + m}, s[{X}:{X + 3}], s{S_T0} offen offset:{m * 1024}{NT_XW} lds")
        else:
            A(f"s_add_u32 m0, s{S_SLOT}, {12288 + gi * 4096}")
            if gi:
                A(f"s_add_u32 s{S_T1}, s{S_T1}, 131072")
            for m in range(4):
                A(f"buffer_load_dwordx4 v{VW + m}, s[{WQ}:{WQ + 3}], s{S_T1} offen offset:{m * 1024}{NT_XW} lds")
    A(f"s_add_u32 s{S_KC}, s{S_KC}, 1")
    A(f"s_cmp_eq_u32 s{S_KC}, 9")
    A(f"s_cselect_b32 s{S_KC}, 0, s{S_KC}")
    A("s_branch L1_ld_next")
    A.label("L1_ld_kv")
    A(f"s_cmp_gt_u32 s{S_U}, 16")
    A("s_cbranch_scc1 L1_ld_v")
    for gi in range(4):
        A(f"s_add_u32 m0, s{S_SLOT}, {gi * 4096}")
        A(f"s_add_u32 s{S_T0}, s{S_KOFF}, {gi * 4096}")
        for m in range(4):
            A(f"buffer_load_dwordx4 v{VK + m}, s[{KS}:{KS + 3}], s{S_T0} offen offset:{m * 1024}{NT_KV} lds")
    A(f"s_add_u32 s{S_KOFF}, s{S_KOFF}, 16384")
    A(f"s_and_b32 s{S_KOFF}, s{S_KOFF}, 0x1ffff")
    A(f"s_cmp_eq_u32 s{S_U}, 9")
    A("s_cbranch_scc1 L1_ld_next")
    A.label("L1_ld_v")
    A(f"s_cmp_gt_u32 s{S_U}, 17")
    A("s_cbranch_scc1 L1_ld_wo")
    for gi in range(4):
        A(f"s_add_u32 m0, s{S_SLOT}, {16384 + gi * 4096}")
        A(f"s_add_u32 s{S_T0}, s{S_VOFF}, {gi * 4096}")
        for m in range(4):
            A(f"buffer_load_dwordx4 v{VV}, s[{VS}:{VS + 3}], s{S_T0} offen offset:{m * 1024}{NT_KV} lds")
    A(f"s_add_u32 s{S_VOFF}, s{S_VOFF}, 16384")
    A(f"s_and_b32 s{S_VOFF}, s{S_VOFF}, 0x1ffff")
    A("s_branch L1_ld_next")
    A.label("L1_ld_wo")
    A(f"s_cmp_gt_u32 s{S_U}, 18")
    A("s_cbranch_scc1 L1_ld_next")
    WO_SLOT = (18 % NSLOT) * SLOT
    A(f"s_lshl_b32 s{S_T0}, s{S_G}, 4")
    A(f"s_lshr_b32 s{S_T1}, s{S_J}, 1")
    A(f"s_add_u32 s{S_KC}, s{S_T0}, s{S_T1}")
    A(f"s_mul_i32 s{S_T0}, s{S_KC}, {32 * 1152}")
    A(f"s_and_b32 s{S_ROT}, s{S_J}, 1")
    A(f"s_mul_i32 s{S_T1}, s{S_ROT}, 576")
    A(f"s_add_u32 s{S_T0}, s{S_T0}, s{S_T1}")
    A(f"v_lshlrev_b32 v{T1}, 4, v0")
    for i in range(18):
        A(f"v_add_u32 v{T0}, {64 * i}, v0")
        A(f"v_mul_u32_u24 v{T0}, 1821, v{T0}")
        A(f"v_lshrrev_b32 v{T0}, 16, v{T0}")
        A(f"v_mul_u32_u24 v{T0}, 576, v{T0}")
        A(f"v_add_u32 v{VO + i}, v{T0}, v{T1}")
        if i % 4 == 0:
            A(f"s_mov_b32 m0, {WO_SLOT + (i // 4) * 4096}")
            if i:
                A(f"s_add_u32 s{S_T0}, s{S_T0}, 4096")
        A(f"buffer_load_dwordx4 v{VO + i}, s[{WO}:{WO + 3}], s{S_T0} offen offset:{(i % 4) * 1024}{NT_XW} lds")
    A.label("L1_ld_next")
    A(f"s_add_u32 s{S_SLOT}, s{S_SLOT}, {SLOT}")
    A(f"s_cmp_eq_u32 s{S_SLOT}, {SLOT * NSLOT}")
    A(f"s_cselect_b32 s{S_SLOT}, 0, s{S_SLOT}")
    A(f"s_add_u32 s{S_U}, s{S_U}, 1")
    A(f"s_cmp_lt_u32 s{S_U}, {18 + LOOK}")
    A("s_cbranch_scc1 L1_ld_loop")
    A.vm = []
    A(f"v_lshrrev_b32 v{T0}, 5, v0")
    A(f"v_lshlrev_b32 v{T0}, 4, v{T0}")
    A(f"v_bfe_u32 v{T1}, v0, 4, 1")
    A(f"v_lshl_add_u32 v{T0}, v{T1}, 2, v{T0}")
    A(f"v_bfe_u32 v{T1}, v0, 2, 2")
    A(f"v_add_u32 v{T0}, v{T0}, v{T1}")
    A(f"v_mul_u32_u24 v{T0}, 576, v{T0}")
    A(f"v_and_b32 v{T1}, 3, v0")
    A(f"v_lshl_add_u32 v{T0}, v{T1}, 3, v{T0}")
    A(f"v_add_u32 v{T0}, {WO_SLOT}, v{T0}")
    A(f"v_lshlrev_b32 v{T1}, 4, v0")
    A(f"s_mul_i32 s{S_T0}, s{S_ROT}, {18 * 131072}")
    A(f"s_lshl_b32 s{S_T1}, s{S_KC}, 10")
    A(f"s_add_u32 s{S_T0}, s{S_T0}, s{S_T1}")
    A(f"s_add_u32 s{S_T0}, s{S_T0}, {WS_WO}")
    A.wait(vm=0)
    ST.stamp()
    RB = 64
    for cb in range(18):
        A(f"ds_read_b64_tr_b16 {vr(RB + 4 * cb, 2)}, v{T0} offset:{cb * 32}")
        A(f"ds_read_b64_tr_b16 {vr(RB + 4 * cb + 2, 2)}, v{T0} offset:{cb * 32 + 8 * 576}")
    for cb in range(18):
        A(f"buffer_store_dwordx4 {vr(RB + 4 * cb, 4)}, v{T1}, s[{WS}:{WS + 3}], s{S_T0} offen")
        A(f"s_add_u32 s{S_T0}, s{S_T0}, 131072")
    ST.stamp()
    ST.flush(WS, S_WAVE, 0, 0)
    A("s_endpgm")

    A.hist, A.vm, A.lgkm, A.smem_out = [], [], [{("s", i) for i in range(4, 20)}], True
    A.label("L1_compute")
    AD, AV = 2, 10
    BX, BW, BK, BV = 14, 15, 16, 17
    M, MC, AL, T0, T1, T2, T3 = 18, 19, 20, 21, 22, 23, 24
    ONES = 28
    QF, S, P, O, L = 32, 64, 96, 112, 176
    AK, AVF = 0, 64
    A(f"s_sub_u32 s{S_WAVE}, s{S_WAVE}, 1")
    A(f"v_and_b32 v{T0}, 31, v0")
    A(f"v_lshrrev_b32 v{T1}, 5, v0")
    A(f"v_bfe_u32 v{T2}, v0, 1, 3")
    A(f"v_xor_b32 v{T2}, v{T2}, v{T1}")
    A(f"v_lshlrev_b32 v{T2}, 4, v{T2}")
    A(f"v_lshl_add_u32 v{BX}, v{T0}, 7, v{T2}")
    A(f"s_lshl_b32 s{S_T0}, s{S_WAVE}, 12")
    A(f"v_add_u32 v{BX}, s{S_T0}, v{BX}")
    A(f"v_and_b32 v{T2}, 15, v0")
    A(f"v_xor_b32 v{T2}, v{T2}, v{T1}")
    A(f"v_lshlrev_b32 v{T2}, 4, v{T2}")
    A(f"v_lshl_add_u32 v{BK}, v{T0}, 8, v{T2}")
    A(f"v_bfe_u32 v{T0}, v0, 2, 2")
    A(f"v_mul_u32_u24 v{T0}, 320, v{T0}")
    A(f"v_bfe_u32 v{T2}, v0, 4, 1")
    A(f"v_lshl_add_u32 v{T0}, v{T2}, 5, v{T0}")
    A(f"v_and_b32 v{T2}, 3, v0")
    A(f"v_lshl_add_u32 v{BV}, v{T2}, 3, v{T0}")
    A(f"v_lshl_add_u32 v{BV}, v{T1}, 10, v{BV}")
    A(f"v_and_b32 v{T2}, 1, v0")
    A(f"v_lshl_add_u32 v{BW}, v{T2}, 4, v{T0}")
    A(f"v_bfe_u32 v{T2}, v0, 1, 1")
    A(f"v_lshl_add_u32 v{BW}, v{T2}, 3, v{BW}")
    A(f"v_lshl_add_u32 v{BW}, v{T1}, 11, v{BW}")
    for i in range(64):
        A(f"v_mov_b32 v{O + i}, 0")
    for i in range(4):
        A(f"v_mov_b32 v{ONES + i}, 0x3f803f80")
    A(f"s_mov_b32 s{S_SLOT}, 0")
    A(f"s_mov_b32 s{S_CNT}, 0")
    A(f"s_mov_b32 s{S_C}, {f32hex(SC)}")
    A.wait(lgkm=0)
    srd(A, WS, 18, 19, WS_SIZE)
    ST.stamp()

    def next_slot():
        return [f"s_add_u32 s{S_SLOT}, s{S_SLOT}, {SLOT}",
                f"s_cmp_eq_u32 s{S_SLOT}, {SLOT * NSLOT}",
                f"s_cselect_b32 s{S_SLOT}, 0, s{S_SLOT}"]

    def addr_ops(base, dst, n, step):
        ops = [f"v_add_u32 v{dst}, s{S_SLOT}, v{base}"]
        for i in range(1, n):
            ops.append(f"v_xor_b32 v{dst + i}, {i * step}, v{dst}")
        return ops

    MF = "v_mfma_f32_32x32x16_bf16"
    for t in addr_ops(BX, AD, 4, 32) + addr_ops(BW, AV, 4, 64):
        A(t)
    A.label("L1_xw")
    A("s_barrier")
    ST.stamp(1)
    reads = []
    for ks in range(4):
        reads.append(f"ds_read_b128 {ar(AVF + 4 * ks, 4)}, v{AD + ks}")
        for dt in range(4):
            f = AK + 4 * (4 * ks + dt)
            reads.append(f"ds_read_b64_tr_b16 {ar(f, 2)}, v{AV + dt} offset:{12288 + ks * 4096}")
            reads.append(f"ds_read_b64_tr_b16 {ar(f + 2, 2)}, v{AV + dt} offset:{12288 + ks * 4096 + 1024}")
    mf = [f"{MF} {vr(O + 16 * dt, 16)}, {ar(AK + 4 * (4 * ks + dt), 4)}, {ar(AVF + 4 * ks, 4)}, {vr(O + 16 * dt, 16)}"
          for ks in range(4) for dt in range(4)]
    fill = {-1: reads[:14]}
    last = spread(fill, reads[14:], 0, 3)
    tail = next_slot() + addr_ops(BX, AD, 4, 32) + addr_ops(BW, AV, 4, 64) + [f"s_add_u32 s{S_CNT}, s{S_CNT}, 1"]
    spread(fill, tail, last + 1, 3)
    interleave(A, mf, fill)
    A(f"s_cmp_lt_u32 s{S_CNT}, 9")
    A("s_cbranch_scc1 L1_xw")
    A.check_loop("L1_xw")
    for t in addr_ops(BK, AD, 8, 32):
        A(t)
    for i in range(32):
        A(f"v_cvt_pk_bf16_f32 v{QF + i}, v{O + 2 * i}, v{O + 2 * i + 1}")
    for i in range(64):
        A(f"v_mov_b32 v{O + i}, 0")
    for i in range(16):
        A(f"v_mov_b32 v{L + i}, 0")

    def k_reads():
        return [f"ds_read_b128 {ar(AK + 4 * (8 * kt + ks), 4)}, v{AD + ks} offset:{kt * 8192}"
                for kt in range(2) for ks in range(8)]

    def v_reads(dt_outer=False):
        r = []
        it = [(tp, dt) for tp in range(4) for dt in range(4)]
        if dt_outer:
            it = [(tp, dt) for dt in range(4) for tp in range(4)]
        for tp, dt in it:
            f = AVF + 4 * (4 * tp + dt)
            r.append(f"ds_read_b64_tr_b16 {ar(f, 2)}, v{AV + dt} offset:{16384 + tp * 4096}")
            r.append(f"ds_read_b64_tr_b16 {ar(f + 2, 2)}, v{AV + dt} offset:{16384 + tp * 4096 + 2048}")
        return r

    def qk_mf():
        return [f"{MF} {vr(S + 16 * kt, 16)}, {ar(AK + 4 * (8 * kt + ks), 4)}, {vr(QF + 4 * ks, 4)}, "
                + ("0" if ks == 0 else vr(S + 16 * kt, 16)) for kt in range(2) for ks in range(8)]

    def pv(tp, dt):
        return f"{MF} {vr(O + 16 * dt, 16)}, {ar(AVF + 4 * (4 * tp + dt), 4)}, {vr(P + 4 * tp, 4)}, {vr(O + 16 * dt, 16)}"

    def lm(tp):
        return f"{MF} {vr(L, 16)}, {vr(ONES, 4)}, {vr(P + 4 * tp, 4)}, {vr(L, 16)}"

    def max_ops(kt, first):
        b = S + 16 * kt
        ops = []
        if kt == 0:
            if first:
                ops.append(f"v_max_f32 v{T0}, v{b}, v{b + 1}")
            else:
                ops.append(f"v_max3_f32 v{T0}, v{b}, v{b + 1}, v{M}")
            ops.append(f"v_max_f32 v{T1}, v{b + 2}, v{b + 3}")
            rest = range(4, 16, 2)
        else:
            rest = range(0, 16, 2)
        for n, i in enumerate(rest):
            t = T0 if n % 2 == 0 else T1
            ops.append(f"v_max3_f32 v{t}, v{b + i}, v{b + i + 1}, v{t}")
        return ops

    def max_fin(first):
        ops = [f"v_max_f32 v{T0}, v{T0}, v{T1}",
               f"v_mov_b32 v{T1}, v{T0}",
               f"v_permlane32_swap_b32 v{T0}, v{T1}",
               f"v_max_f32 v{M}, v{T0}, v{T1}"]
        if first:
            ops += [f"v_mul_f32 v{MC}, s{S_C}, v{M}", f"v_mov_b32 v{AL}, 1.0"]
        else:
            ops += [f"v_mov_b32 v{T2}, v{MC}",
                    f"v_mul_f32 v{MC}, s{S_C}, v{M}",
                    f"v_sub_f32 v{T2}, v{T2}, v{MC}",
                    f"v_exp_f32 v{AL}, v{T2}"]
        return ops

    def p_chunk(tp):
        b = S + 8 * tp
        ops = []
        for i in range(8):
            ops.append(f"v_fma_f32 v{b + i}, v{b + i}, s{S_C}, -v{MC}")
        for i in range(8):
            ops.append(f"v_exp_f32 v{b + i}, v{b + i}")
        return ops, [f"v_cvt_pk_bf16_f32 v{P + 4 * tp + i}, v{b + 2 * i}, v{b + 2 * i + 1}" for i in range(4)]

    def rescale():
        return [f"v_mul_f32 v{L}, v{AL}, v{L}"] + [f"v_mul_f32 v{O + i}, v{AL}, v{O + i}" for i in range(64)]

    A("s_barrier")
    ST.stamp()
    kr = k_reads()
    fill = {-1: kr[:10]}
    last = spread(fill, kr[10:], 0, 2)
    spread(fill, next_slot() + addr_ops(BK, AD, 8, 32) + addr_ops(BV, AV, 4, 64), last + 1, 4)
    spread(fill, max_ops(0, True), 11, 2)
    interleave(A, qk_mf(), fill)
    for t in max_ops(1, True) + max_fin(True):
        A(t)
    for tp in range(4):
        a, b = p_chunk(tp)
        for t in a + b:
            A(t)
    A(f"s_mov_b32 s{S_CNT}, 0")
    A.label("L1_kv")
    A("s_barrier")
    ST.stamp()
    kr, vrd, rs = k_reads(), v_reads(), rescale()
    mf = qk_mf()
    for tp in range(4):
        mf += [pv(tp, dt) for dt in range(4)] + [lm(tp)]
    fill = {-1: kr[:8] + rs[:12] + kr[8:12] + rs[12:24]}
    spread(fill, kr[12:] + vrd, 0, 2)
    spread(fill, rs[24:], 0, 4)
    spread(fill, max_ops(0, False), 11, 2)
    last = spread(fill, max_ops(1, False) + max_fin(False), 18, 6)
    s0 = last + 1
    for tp in range(4):
        a, b = p_chunk(tp)
        last = spread(fill, a, s0, 6)
        last = max(last, 20 + 5 * tp)
        last = spread(fill, b, last, 100)
        s0 = last + 1
    tail = next_slot() + addr_ops(BK, AD, 8, 32) + addr_ops(BV, AV, 4, 64) + [f"s_add_u32 s{S_CNT}, s{S_CNT}, 1"]
    over = {k: v for k, v in fill.items() if k >= len(mf)}
    for k in over:
        del fill[k]
    interleave(A, mf, fill)
    for k in sorted(over):
        for t in over[k]:
            A(t)
    for t in tail:
        A(t)
    A(f"s_cmp_lt_u32 s{S_CNT}, 7")
    A("s_cbranch_scc1 L1_kv")
    A.check_loop("L1_kv")
    rs = rescale()
    fill = {-1: rs[:1]}
    spread(fill, rs[1:], 0, 16)
    interleave(A, [lm(tp) for tp in range(4)], fill)
    A(f"v_bfe_u32 v{T0}, v0, 4, 1")
    A(f"v_lshlrev_b32 v{T0}, 17, v{T0}")
    A(f"v_lshrrev_b32 v{T1}, 5, v0")
    A(f"v_lshl_add_u32 v{T0}, v{T1}, 8, v{T0}")
    A(f"v_and_b32 v{T1}, 15, v0")
    A(f"v_lshl_add_u32 v{T0}, v{T1}, 4, v{T0}")
    A(f"s_mul_i32 s{S_T0}, s{S_B}, 6")
    A(f"s_lshl_b32 s{S_T1}, s{S_WAVE}, 1")
    A(f"s_add_u32 s{S_T0}, s{S_T0}, s{S_T1}")
    A(f"s_lshl_b32 s{S_T0}, s{S_T0}, 17")
    A(f"s_lshl_b32 s{S_T1}, s{S_HQ}, 12")
    A(f"s_add_u32 s{S_T0}, s{S_T0}, s{S_T1}")
    if WS_O:
        A(f"s_add_u32 s{S_T0}, s{S_T0}, {WS_O}")
    A(f"v_rcp_f32 v{AL}, v{L}")
    A("s_barrier")
    ST.stamp()
    vrd = v_reads(True)
    mf = [pv(tp, dt) for dt in range(4) for tp in range(4)]
    fill = {-1: vrd[:14]}
    spread(fill, vrd[14:], 0, 3)

    def fin(dt):
        ops = []
        for t in range(2):
            b = O + 16 * dt + 8 * t
            for i in range(8):
                ops.append(f"v_mul_f32 v{b + i}, v{AL}, v{b + i}")
            d = S + 8 * dt + 4 * t
            for i in range(4):
                ops.append(f"v_cvt_pk_bf16_f32 v{d + i}, v{b + 2 * i}, v{b + 2 * i + 1}")
            ops.append(f"buffer_store_dwordx4 {vr(d, 4)}, v{T0}, s[{WS}:{WS + 3}], s{S_T0} offen offset:{dt * 1024 + t * 512}")
        return ops
    for dt in range(3):
        spread(fill, fin(dt), 4 * dt + 6, 7)
    over = {k: v for k, v in fill.items() if k >= len(mf)}
    for k in over:
        del fill[k]
    interleave(A, mf, fill)
    for k in sorted(over):
        for t in over[k]:
            A(t)
    for t in fin(3):
        A(t)
    ST.stamp()
    A(f"s_add_u32 s{S_WAVE}, s{S_WAVE}, 1")
    ST.flush(WS, S_WAVE, 0, 0)
    if STAMPS == 3:
        A("s_cmp_lg_u32 s2, 0")
        A("s_cbranch_scc1 L1_end")
        A(f"s_cmp_lg_u32 s{S_WAVE}, 1")
        A("s_cbranch_scc1 L1_end")
        srd(A, X, 16, 17, 256)
        A(f"buffer_store_dword v250, v251, s[{X}:{X + 3}], 0 offen")
    A.label("L1_end")
    A("s_endpgm")
    desc = dict(name=K, vgpr=(256 + 128 if STAMPS else 192 + 128), accum=(256 if STAMPS else 192), sgpr=72)
    return A, desc


def gen_k2():
    A = Asm()
    K = "k2_kernel"
    U = K2U
    A.raw(f".globl {K}\n.p2align 8\n.type {K},@function\n{K}:")
    S_G, S_J, S_RG, S_CG, S_WAVE, S_T0, S_T1, S_KO, S_CNT, S_BASE = 20, 21, 22, 23, 24, 25, 26, 27, 36, 37
    WS, OS = 28, 32
    S_IDX, S_TM = 38, 40
    VA = 2
    T0, T1 = 8, 9
    ACC = 12
    FR = 48
    A("s_cmp_ge_u32 s2, 192")
    A("s_cbranch_scc1 L2_end")
    A("s_load_dwordx4 s[4:7], s[0:1], 48")
    A("s_load_dwordx2 s[8:9], s[0:1], 40")
    A("v_lshrrev_b32 v1, 6, v0")
    A(f"s_and_b32 s{S_G}, s2, 7")
    A(f"v_readfirstlane_b32 s{S_WAVE}, v1")
    A("v_and_b32 v0, 63, v0")
    ST = Stamper(A, 250, S_IDX, S_TM)
    ST.init()
    A(f"s_lshr_b32 s{S_J}, s2, 3")
    A(f"s_lshr_b32 s{S_T0}, s{S_G}, 1")
    A(f"s_lshl_b32 s{S_T0}, s{S_T0}, 2")
    A(f"s_and_b32 s{S_T1}, s{S_J}, 3")
    A(f"s_add_u32 s{S_RG}, s{S_T0}, s{S_T1}")
    A(f"s_lshl_b32 s{S_KO}, s{S_T1}, 1")
    A(f"s_and_b32 s{S_T0}, s{S_G}, 1")
    A(f"s_mul_i32 s{S_T0}, s{S_T0}, 6")
    A(f"s_lshr_b32 s{S_T1}, s{S_J}, 2")
    A(f"s_add_u32 s{S_CG}, s{S_T0}, s{S_T1}")
    A(f"s_add_u32 s{S_KO}, s{S_KO}, s{S_T1}")
    A(f"s_and_b32 s{S_KO}, s{S_KO}, 7")
    A(f"s_lshl_b32 s{S_KO}, s{S_KO}, 12")
    A(f"s_lshl_b32 s{S_BASE}, s{S_WAVE}, 15")
    A(f"v_lshlrev_b32 v{T0}, 4, v0")
    A(f"s_mul_i32 s{S_T0}, s{S_CG}, {3 * 131072}")
    A(f"s_add_u32 s{S_T0}, s{S_T0}, {WS_WO}")
    A(f"s_add_u32 s{S_T0}, s{S_T0}, s{S_BASE}")
    A(f"v_add_u32 v{VA}, s{S_T0}, v{T0}")
    A(f"v_add_u32 v{VA + 1}, 131072, v{VA}")
    A(f"v_add_u32 v{VA + 2}, 262144, v{VA}")
    A(f"s_mul_i32 s{S_T0}, s{S_RG}, {3 * 131072}")
    if WS_O:
        A(f"s_add_u32 s{S_T0}, s{S_T0}, {WS_O}")
    A(f"s_add_u32 s{S_T0}, s{S_T0}, s{S_BASE}")
    A(f"v_add_u32 v{VA + 3}, s{S_T0}, v{T0}")
    A(f"v_add_u32 v{VA + 4}, 131072, v{VA + 3}")
    A(f"v_add_u32 v{VA + 5}, 262144, v{VA + 3}")
    for i in range(36):
        A(f"v_mov_b32 v{ACC + i}, 0")
    A(f"s_mov_b32 s{S_CNT}, 0")
    A.wait(lgkm=0)
    srd(A, WS, 6, 7, WS_SIZE)
    srd(A, OS, 8, 9, 884736)
    ST.stamp()

    def loads(m):
        return [f"buffer_load_dwordx4 {vr(FR + 24 * m + 4 * i, 4)}, v{VA + i}, s[{WS}:{WS + 3}], s{S_KO} offen offset:{m * 1024}"
                for i in (0, 3, 4, 5, 1, 2)]

    def mfs(m):
        return [f"v_mfma_f32_16x16x32_bf16 {vr(ACC + 4 * (3 * a + b), 4)}, {vr(FR + 24 * m + 4 * a, 4)}, "
                f"{vr(FR + 24 * m + 12 + 4 * b, 4)}, {vr(ACC + 4 * (3 * a + b), 4)}" for a in range(3) for b in range(3)]

    def adv():
        A(f"s_add_u32 s{S_KO}, s{S_KO}, {1024 * U}")
        A(f"s_and_b32 s{S_KO}, s{S_KO}, 0x7fff")
    for m in range(U):
        for t in loads(m):
            A(t)
    adv()
    state0 = [set(x) for x in A.vm]
    A.label("L2_loop")
    for m in range(U):
        for t in mfs(m):
            A(t)
        for t in loads(m):
            A(t)
    adv()
    A(f"s_add_u32 s{S_CNT}, s{S_CNT}, 1")
    A(f"s_cmp_lt_u32 s{S_CNT}, {32 // U - 1}")
    A("s_cbranch_scc1 L2_loop")
    A.check_loop("L2_loop")
    assert [set(x) for x in A.vm] == state0, (A.vm, state0)
    for m in range(U):
        for t in mfs(m):
            A(t)
    ST.stamp()
    A(f"s_mul_i32 s{S_T0}, s{S_WAVE}, 9216")
    A(f"v_add_u32 v{T1}, s{S_T0}, v{T0}")
    for i in range(9):
        A(f"ds_write_b128 v{T1}, {vr(ACC + 4 * i, 4)} offset:{i * 1024}")
    A(f"v_and_b32 v{VA}, 15, v0")
    A(f"v_mul_u32_u24 v{VA}, 1152, v{VA}")
    A(f"v_lshrrev_b32 v{VA + 1}, 4, v0")
    A(f"v_lshl_add_u32 v{VA}, v{VA + 1}, 3, v{VA}")
    A(f"s_mul_i32 s{S_T0}, s{S_RG}, {48 * 1152}")
    A(f"s_mul_i32 s{S_T1}, s{S_CG}, 96")
    A(f"s_add_u32 s{S_BASE}, s{S_T0}, s{S_T1}")
    A(f"s_lshl_b32 s{S_T0}, s{S_WAVE}, 10")
    A(f"v_add_u32 v{T1}, s{S_T0}, v{T0}")
    A.wait(lgkm=0)
    A("s_barrier")
    for rep in range(3):
        if rep == 2:
            A(f"s_cmp_lg_u32 s{S_WAVE}, 0")
            A("s_cbranch_scc1 L2_done")
        for w in range(4):
            A(f"ds_read_b128 {vr(FR + 16 * rep + 4 * w, 4)}, v{T1} offset:{w * 9216 + rep * 4096}")
        A(f"s_add_u32 s{S_T0}, s{S_WAVE}, {4 * rep}")
        A(f"s_mul_i32 s{S_T1}, s{S_T0}, 11")
        A(f"s_lshr_b32 s{S_T1}, s{S_T1}, 5")
        A(f"s_mul_i32 s{S_KO}, s{S_T1}, 3")
        A(f"s_sub_u32 s{S_T0}, s{S_T0}, s{S_KO}")
        A(f"s_mul_i32 s{S_T0}, s{S_T0}, {16 * 1152}")
        A(f"s_lshl_b32 s{S_T1}, s{S_T1}, 5")
        A(f"s_add_u32 s{S_T0}, s{S_T0}, s{S_T1}")
        A(f"s_add_u32 s{S_T0}, s{S_T0}, s{S_BASE}")
        b = FR + 16 * rep
        for r in range(4):
            A(f"v_add_f32 v{b + r}, v{b + r}, v{b + 4 + r}")
            A(f"v_add_f32 v{b + 8 + r}, v{b + 8 + r}, v{b + 12 + r}")
        for r in range(4):
            A(f"v_add_f32 v{b + r}, v{b + r}, v{b + 8 + r}")
        A(f"v_cvt_pk_bf16_f32 v{b}, v{b}, v{b + 1}")
        A(f"v_cvt_pk_bf16_f32 v{b + 1}, v{b + 2}, v{b + 3}")
        A(f"buffer_store_dwordx2 {vr(b, 2)}, v{VA}, s[{OS}:{OS + 3}], s{S_T0} offen")
    A.label("L2_done")
    ST.stamp()
    ST.flush(WS, S_WAVE, 0, 1)
    if STAMPS == 3:
        A("s_cmp_lg_u32 s2, 0")
        A("s_cbranch_scc1 L2_end")
        A(f"s_cmp_lg_u32 s{S_WAVE}, 0")
        A("s_cbranch_scc1 L2_end")
        A(f"s_mov_b32 s{S_T0}, {WS_STAMP + 256}")
        A(f"buffer_load_dword v252, v251, s[{WS}:{WS + 3}], s{S_T0} offen")
        srd(A, OS, 4, 5, 256)
        for i in range(3):
            A(f"v_readlane_b32 s{S_T0}, v250, {i}")
            A("s_nop 4")
            A(f"v_writelane_b32 v252, s{S_T0}, {11 + i}")
        A(f"buffer_store_dword v252, v251, s[{OS}:{OS + 3}], 0 offen")
    A.label("L2_end")
    A("s_endpgm")
    nv = max(FR + 24 * U, FR + 48)
    nv = 256 if STAMPS else (nv + 3) // 4 * 4
    desc = dict(name=K, vgpr=nv, accum=nv, sgpr=48)
    return A, desc


def descriptor(d):
    return f""".amdhsa_kernel {d['name']}
  .amdhsa_next_free_vgpr {d['vgpr']}
  .amdhsa_next_free_sgpr {d['sgpr']}
  .amdhsa_accum_offset {d['accum']}
  .amdhsa_group_segment_fixed_size 0
  .amdhsa_kernarg_size 64
  .amdhsa_user_sgpr_count 2
  .amdhsa_user_sgpr_kernarg_segment_ptr 1
  .amdhsa_system_sgpr_workgroup_id_x 1
.end_amdhsa_kernel
"""


def main():
    a1, d1 = gen_k1()
    a2, d2 = gen_k2()
    txt = HEADER
    txt += "; @launch kernel=k1_kernel grid=(256,1,1) block=(256,1,1) lds=163840\n"
    txt += "; @launch kernel=k2_kernel grid=(192,1,1) block=(256,1,1) lds=36864\n"
    for _ in range(int(os.environ.get("EXTRA", "0"))):
        txt += "; @launch kernel=k3_kernel grid=(256,1,1) block=(256,1,1) lds=0\n"
    txt += '.amdgcn_target "amdgcn-amd-amdhsa--gfx950"\n.text\n'
    txt += a1.text() + a2.text()
    if os.environ.get("EXTRA"):
        txt += ".globl k3_kernel\n.p2align 8\n.type k3_kernel,@function\nk3_kernel:\n    s_endpgm\n"
    txt += '.section .rodata,"a"\n.p2align 6\n' + descriptor(d1) + ".p2align 6\n" + descriptor(d2)
    if os.environ.get("EXTRA"):
        txt += ".p2align 6\n" + descriptor(dict(name="k3_kernel", vgpr=8, accum=8, sgpr=16))
    open(OUT, "w").write(txt)
    print("wrote", OUT, "nops k1", a1.nops, "k2", a2.nops)


if __name__ == "__main__":
    main()
```

```python
import math, struct, sys, os
from asmlib import Asm

NAME = "standalone__gqa_block_cached__near_ridge"
STAMPS = int(os.environ.get("STAMPS", "0"))
LOOK = int(os.environ.get("LOOK", "2"))
NT_KV = os.environ.get("NT_KV", " nt")
NT_XW = os.environ.get("NT_XW", " nt")
K2U = int(os.environ.get("K2U", "2"))
OUT = os.environ.get("OUT", f"cdna_kernels/{NAME}.s")

WS_O = 0
WS_WO = 8 << 20
WS_STAMP = 16 << 20
WS_SIZE = 32 << 20
SLOT = 32768
NSLOT = 5


def f32hex(x):
    return "0x%08x" % struct.unpack("<I", struct.pack("<f", x))[0]


SC = math.log2(math.e) / math.sqrt(128.0)

HEADER = """; Kernarg layout for this problem (64 bytes, ptrs only, base s[0:1]):
"""


def vr(a, n=1):
    return f"v{a}" if n == 1 else f"v[{a}:{a + n - 1}]"


def ar(a, n=1):
    return f"a{a}" if n == 1 else f"a[{a}:{a + n - 1}]"


def sr(a, n=1):
    return f"s{a}" if n == 1 else f"s[{a}:{a + n - 1}]"


def srd(A, d, lo, hi, size):
    if lo != d:
        A(f"s_mov_b32 s{d}, s{lo}")
        A(f"s_mov_b32 s{d + 1}, s{hi}")
    if isinstance(size, int):
        A(f"s_mov_b32 s{d + 2}, {size}")
    else:
        A(f"s_mov_b32 s{d + 2}, {size}")
    A(f"s_mov_b32 s{d + 3}, 0x00020000")


class Stamper:
    def __init__(self, A, vt, sidx, stmp):
        self.A, self.vt, self.sidx, self.stmp = A, vt, sidx, stmp

    def init(self):
        if STAMPS:
            self.A(f"v_mov_b32 v{self.vt}, 0")
            self.A(f"s_mov_b32 s{self.sidx}, 0")

    def stamp(self, lvl=0):
        if STAMPS and not (STAMPS == 3 and lvl):
            A = self.A
            A(f"{'s_memrealtime' if STAMPS >= 2 else 's_memtime'} s[{self.stmp}:{self.stmp + 1}]")
            A.wait(lgkm=0)
            A(f"s_mov_b32 m0, s{self.sidx}")
            A("s_nop 0")
            A(f"v_writelane_b32 v{self.vt}, s{self.stmp}, m0")
            A(f"s_add_u32 s{self.sidx}, s{self.sidx}, 1")

    def flush(self, wssrd, s_wave, vlane, kern):
        if STAMPS:
            A = self.A
            A(f"s_lshl_b32 s{self.stmp}, s2, 3")
            A(f"s_add_u32 s{self.stmp}, s{self.stmp}, s{s_wave}")
            A(f"s_lshl_b32 s{self.stmp}, s{self.stmp}, 8")
            A(f"s_add_u32 s{self.stmp}, s{self.stmp}, {WS_STAMP + kern * (1 << 20)}")
            A(f"v_lshlrev_b32 v{self.vt + 1}, 2, v{vlane}")
            A(f"buffer_store_dword v{self.vt}, v{self.vt + 1}, s[{wssrd}:{wssrd + 3}], s{self.stmp} offen")


def interleave(A, mf, fill):
    for t in fill.get(-1, []):
        A(t)
    for i, m in enumerate(mf):
        A(m)
        for t in fill.get(i, []):
            A(t)


def spread(fill, ops, start, per, cost=None):
    s, acc = start, 0.0
    for o in ops:
        c = 2.0 if o.startswith("v_exp") else 1.0
        if acc + c > per + 1e-9 and acc > 0:
            s += 1
            acc = 0.0
        fill.setdefault(s, []).append(o)
        acc += c
    return s


def gen_k1():
    A = Asm()
    K = "k1_kernel"
    A.raw(f".globl {K}\n.p2align 8\n.type {K},@function\n{K}:")
    S_G, S_J, S_HS, S_B, S_HQ, S_WAVE = 20, 21, 22, 23, 24, 25
    X, KS, VS, WQ, WO, WS = 28, 32, 36, 40, 44, 48
    S_U, S_SLOT, S_KC, S_T0, S_T1, S_KOFF, S_VOFF, S_ROT = 52, 53, 54, 55, 56, 57, 58, 59
    S_CNT, S_C, S_IDX, S_TM = 60, 61, 62, 64
    A("s_cmp_ge_u32 s2, 256")
    A("s_cbranch_scc1 L1_end")
    A("s_load_dwordx16 s[4:19], s[0:1], 0")
    A("v_lshrrev_b32 v1, 6, v0")
    A(f"s_and_b32 s{S_G}, s2, 7")
    A(f"v_readfirstlane_b32 s{S_WAVE}, v1")
    A(f"s_lshr_b32 s{S_J}, s2, 3")
    A(f"s_and_b32 s{S_HS}, s{S_J}, 3")
    A(f"s_lshr_b32 s{S_B}, s{S_J}, 2")
    A(f"s_lshl_b32 s{S_HQ}, s{S_G}, 2")
    A(f"s_add_u32 s{S_HQ}, s{S_HQ}, s{S_HS}")
    A("v_and_b32 v0, 63, v0")
    ST = Stamper(A, 250, S_IDX, S_TM)
    ST.init()
    A(f"s_cmp_lg_u32 s{S_WAVE}, 0")
    A("s_cbranch_scc1 L1_compute")

    VX, VW, VK, VV, VO = 2, 6, 10, 14, 16
    T0, T1, T2, T3 = 40, 41, 42, 43
    A(f"v_lshrrev_b32 v{T0}, 4, v0")
    A(f"v_and_b32 v{T1}, 15, v0")
    A(f"v_lshrrev_b32 v{T2}, 3, v0")
    A(f"v_and_b32 v{T3}, 7, v0")
    A(f"v_mul_u32_u24 v{T2}, 1152, v{T2}")
    for m in range(2):
        A(f"v_add_u32 v{VX + m}, {4 * m}, v{T0}")
        A(f"v_xor_b32 v{VX + m}, v{VX + m}, v{T3}")
        A(f"v_lshl_add_u32 v{VX + m}, v{VX + m}, 4, v{T2}")
    A(f"v_add_u32 v{VX + 1}, 8192, v{VX + 1}")
    A(f"v_add_u32 v{VX + 2}, 16384, v{VX + 0}")
    A(f"v_add_u32 v{VX + 3}, 16384, v{VX + 1}")
    A(f"v_lshlrev_b32 v{T2}, 2, v{T0}")
    A(f"v_xor_b32 v{T2}, v{T2}, v{T1}")
    A(f"v_lshlrev_b32 v{T2}, 4, v{T2}")
    A(f"v_lshl_add_u32 v{VW}, v{T0}, 13, v{T2}")
    for m in range(1, 4):
        A(f"v_add_u32 v{VW + m}, {31744 * m}, v{VW}")
    A(f"v_lshl_add_u32 v{VV}, v{T0}, 8, v{T2}")
    for m in range(4):
        A(f"v_add_u32 v{VK + m}, {4 * m}, v{T0}")
        A(f"v_xor_b32 v{VK + m}, v{VK + m}, v{T1}")
        A(f"v_lshlrev_b32 v{VK + m}, 4, v{VK + m}")
        A(f"v_lshl_add_u32 v{VK + m}, v{T0}, 8, v{VK + m}")
    A(f"s_lshl_b32 s{S_KC}, s{S_HS}, 1")
    A(f"s_add_u32 s{S_KC}, s{S_KC}, s{S_B}")
    A(f"s_cmp_ge_u32 s{S_KC}, 9")
    A(f"s_cselect_b32 s{S_T0}, 9, 0")
    A(f"s_sub_u32 s{S_KC}, s{S_KC}, s{S_T0}")
    A(f"s_add_u32 s{S_ROT}, s{S_B}, s{S_G}")
    A(f"s_and_b32 s{S_ROT}, s{S_ROT}, 7")
    A(f"s_lshl_b32 s{S_KOFF}, s{S_ROT}, 14")
    A(f"s_mov_b32 s{S_VOFF}, s{S_KOFF}")
    A(f"s_mov_b32 s{S_U}, 0")
    A(f"s_mov_b32 s{S_SLOT}, 0")
    A.wait(lgkm=0)
    A(f"s_mul_i32 s{S_T0}, s{S_B}, 110592")
    A(f"s_add_u32 s{X}, s4, s{S_T0}")
    A(f"s_addc_u32 s{X + 1}, s5, 0")
    srd(A, X, X, X + 1, 110592)
    A(f"s_lshl_b32 s{S_T0}, s{S_HQ}, 8")
    A(f"s_add_u32 s{WQ}, s10, s{S_T0}")
    A(f"s_addc_u32 s{WQ + 1}, s11, 0")
    A(f"s_sub_u32 s{WQ + 2}, 4718592, s{S_T0}")
    A(f"s_mov_b32 s{WQ + 3}, 0x00020000")
    A(f"s_lshr_b32 s{S_T0}, s{S_HQ}, 1")
    A(f"s_lshl_b32 s{S_T1}, s{S_B}, 4")
    A(f"s_add_u32 s{S_T0}, s{S_T0}, s{S_T1}")
    A(f"s_lshl_b32 s{S_T0}, s{S_T0}, 17")
    A(f"s_add_u32 s{KS}, s6, s{S_T0}")
    A(f"s_addc_u32 s{KS + 1}, s7, 0")
    srd(A, KS, KS, KS + 1, 131072)
    A(f"s_add_u32 s{VS}, s8, s{S_T0}")
    A(f"s_addc_u32 s{VS + 1}, s9, 0")
    srd(A, VS, VS, VS + 1, 131072)
    srd(A, WO, 12, 13, 4718592)
    srd(A, WS, 18, 19, WS_SIZE)
    ST.stamp()

    sizes = [28] * 9 + [16] + [32] * 7 + [16] + [18]
    A.label("L1_ld_loop")
    A(f"s_cmp_lt_u32 s{S_U}, {LOOK}")
    A("s_cbranch_scc1 L1_ld_issue")
    cnts = {}
    for u in range(LOOK, 18 + LOOK):
        t = u - LOOK
        c = sum(sizes[i] for i in range(t + 1, u) if i < len(sizes))
        cnts[u] = min(c, 63)
    runs = []
    for u in sorted(cnts):
        if runs and runs[-1][2] == cnts[u]:
            runs[-1][1] = u
        else:
            runs.append([u, u, cnts[u]])
    for i, (u0, u1, c) in enumerate(runs):
        if i < len(runs) - 1:
            A(f"s_cmp_gt_u32 s{S_U}, {u1}")
            A(f"s_cbranch_scc1 L1_w{i + 1}")
            A.wait(vm=c)
            A("s_branch L1_ld_bar")
            A.label(f"L1_w{i + 1}")
        else:
            A.wait(vm=c)
    A.label("L1_ld_bar")
    ST.stamp()
    A("s_barrier")
    A.label("L1_ld_issue")
    A(f"s_cmp_gt_u32 s{S_U}, 8")
    A("s_cbranch_scc1 L1_ld_kv")
    A(f"s_lshl_b32 s{S_T0}, s{S_KC}, 7")
    A(f"s_lshl_b32 s{S_T1}, s{S_KC}, 19")
    order = [("w", 0), ("x", 0), ("w", 1), ("x", 1), ("w", 2), ("x", 2), ("w", 3)]
    for typ, gi in order:
        if typ == "x":
            A(f"s_add_u32 m0, s{S_SLOT}, {gi * 4096}")
            if gi:
                A(f"s_add_u32 s{S_T0}, s{S_T0}, 36864")
            for m in range(4):
                A(f"buffer_load_dwordx4 v{VX + m}, s[{X}:{X + 3}], s{S_T0} offen offset:{m * 1024}{NT_XW} lds")
        else:
            A(f"s_add_u32 m0, s{S_SLOT}, {12288 + gi * 4096}")
            if gi:
                A(f"s_add_u32 s{S_T1}, s{S_T1}, 131072")
            for m in range(4):
                A(f"buffer_load_dwordx4 v{VW + m}, s[{WQ}:{WQ + 3}], s{S_T1} offen offset:{m * 1024}{NT_XW} lds")
    A(f"s_add_u32 s{S_KC}, s{S_KC}, 1")
    A(f"s_cmp_eq_u32 s{S_KC}, 9")
    A(f"s_cselect_b32 s{S_KC}, 0, s{S_KC}")
    A("s_branch L1_ld_next")
    A.label("L1_ld_kv")
    A(f"s_cmp_gt_u32 s{S_U}, 16")
    A("s_cbranch_scc1 L1_ld_v")
    for gi in range(4):
        A(f"s_add_u32 m0, s{S_SLOT}, {gi * 4096}")
        A(f"s_add_u32 s{S_T0}, s{S_KOFF}, {gi * 4096}")
        for m in range(4):
            A(f"buffer_load_dwordx4 v{VK + m}, s[{KS}:{KS + 3}], s{S_T0} offen offset:{m * 1024}{NT_KV} lds")
    A(f"s_add_u32 s{S_KOFF}, s{S_KOFF}, 16384")
    A(f"s_and_b32 s{S_KOFF}, s{S_KOFF}, 0x1ffff")
    A(f"s_cmp_eq_u32 s{S_U}, 9")
    A("s_cbranch_scc1 L1_ld_next")
    A.label("L1_ld_v")
    A(f"s_cmp_gt_u32 s{S_U}, 17")
    A("s_cbranch_scc1 L1_ld_wo")
    for gi in range(4):
        A(f"s_add_u32 m0, s{S_SLOT}, {16384 + gi * 4096}")
        A(f"s_add_u32 s{S_T0}, s{S_VOFF}, {gi * 4096}")
        for m in range(4):
            A(f"buffer_load_dwordx4 v{VV}, s[{VS}:{VS + 3}], s{S_T0} offen offset:{m * 1024}{NT_KV} lds")
    A(f"s_add_u32 s{S_VOFF}, s{S_VOFF}, 16384")
    A(f"s_and_b32 s{S_VOFF}, s{S_VOFF}, 0x1ffff")
    A("s_branch L1_ld_next")
    A.label("L1_ld_wo")
    A(f"s_cmp_gt_u32 s{S_U}, 18")
    A("s_cbranch_scc1 L1_ld_next")
    WO_SLOT = (18 % NSLOT) * SLOT
    A(f"s_lshl_b32 s{S_T0}, s{S_G}, 4")
    A(f"s_lshr_b32 s{S_T1}, s{S_J}, 1")
    A(f"s_add_u32 s{S_KC}, s{S_T0}, s{S_T1}")
    A(f"s_mul_i32 s{S_T0}, s{S_KC}, {32 * 1152}")
    A(f"s_and_b32 s{S_ROT}, s{S_J}, 1")
    A(f"s_mul_i32 s{S_T1}, s{S_ROT}, 576")
    A(f"s_add_u32 s{S_T0}, s{S_T0}, s{S_T1}")
    A(f"v_lshlrev_b32 v{T1}, 4, v0")
    for i in range(18):
        A(f"v_add_u32 v{T0}, {64 * i}, v0")
        A(f"v_mul_u32_u24 v{T0}, 1821, v{T0}")
        A(f"v_lshrrev_b32 v{T0}, 16, v{T0}")
        A(f"v_mul_u32_u24 v{T0}, 576, v{T0}")
        A(f"v_add_u32 v{VO + i}, v{T0}, v{T1}")
        if i % 4 == 0:
            A(f"s_mov_b32 m0, {WO_SLOT + (i // 4) * 4096}")
            if i:
                A(f"s_add_u32 s{S_T0}, s{S_T0}, 4096")
        A(f"buffer_load_dwordx4 v{VO + i}, s[{WO}:{WO + 3}], s{S_T0} offen offset:{(i % 4) * 1024}{NT_XW} lds")
    A.label("L1_ld_next")
    A(f"s_add_u32 s{S_SLOT}, s{S_SLOT}, {SLOT}")
    A(f"s_cmp_eq_u32 s{S_SLOT}, {SLOT * NSLOT}")
    A(f"s_cselect_b32 s{S_SLOT}, 0, s{S_SLOT}")
    A(f"s_add_u32 s{S_U}, s{S_U}, 1")
    A(f"s_cmp_lt_u32 s{S_U}, {18 + LOOK}")
    A("s_cbranch_scc1 L1_ld_loop")
    A.vm = []
    A(f"v_lshrrev_b32 v{T0}, 5, v0")
    A(f"v_lshlrev_b32 v{T0}, 4, v{T0}")
    A(f"v_bfe_u32 v{T1}, v0, 4, 1")
    A(f"v_lshl_add_u32 v{T0}, v{T1}, 2, v{T0}")
    A(f"v_bfe_u32 v{T1}, v0, 2, 2")
    A(f"v_add_u32 v{T0}, v{T0}, v{T1}")
    A(f"v_mul_u32_u24 v{T0}, 576, v{T0}")
    A(f"v_and_b32 v{T1}, 3, v0")
    A(f"v_lshl_add_u32 v{T0}, v{T1}, 3, v{T0}")
    A(f"v_add_u32 v{T0}, {WO_SLOT}, v{T0}")
    A(f"v_lshlrev_b32 v{T1}, 4, v0")
    A(f"s_mul_i32 s{S_T0}, s{S_ROT}, {18 * 131072}")
    A(f"s_lshl_b32 s{S_T1}, s{S_KC}, 10")
    A(f"s_add_u32 s{S_T0}, s{S_T0}, s{S_T1}")
    A(f"s_add_u32 s{S_T0}, s{S_T0}, {WS_WO}")
    A.wait(vm=0)
    ST.stamp()
    RB = 64
    for cb in range(18):
        A(f"ds_read_b64_tr_b16 {vr(RB + 4 * cb, 2)}, v{T0} offset:{cb * 32}")
        A(f"ds_read_b64_tr_b16 {vr(RB + 4 * cb + 2, 2)}, v{T0} offset:{cb * 32 + 8 * 576}")
    for cb in range(18):
        A(f"buffer_store_dwordx4 {vr(RB + 4 * cb, 4)}, v{T1}, s[{WS}:{WS + 3}], s{S_T0} offen")
        A(f"s_add_u32 s{S_T0}, s{S_T0}, 131072")
    ST.stamp()
    ST.flush(WS, S_WAVE, 0, 0)
    A("s_endpgm")

    A.hist, A.vm, A.lgkm, A.smem_out = [], [], [{("s", i) for i in range(4, 20)}], True
    A.label("L1_compute")
    AD, AV = 2, 10
    BX, BW, BK, BV = 14, 15, 16, 17
    M, MC, AL, T0, T1, T2, T3 = 18, 19, 20, 21, 22, 23, 24
    ONES = 28
    QF, S, P, O, L = 32, 64, 96, 112, 176
    AK, AVF = 0, 64
    A(f"s_sub_u32 s{S_WAVE}, s{S_WAVE}, 1")
    A(f"v_and_b32 v{T0}, 31, v0")
    A(f"v_lshrrev_b32 v{T1}, 5, v0")
    A(f"v_bfe_u32 v{T2}, v0, 1, 3")
    A(f"v_xor_b32 v{T2}, v{T2}, v{T1}")
    A(f"v_lshlrev_b32 v{T2}, 4, v{T2}")
    A(f"v_lshl_add_u32 v{BX}, v{T0}, 7, v{T2}")
    A(f"s_lshl_b32 s{S_T0}, s{S_WAVE}, 12")
    A(f"v_add_u32 v{BX}, s{S_T0}, v{BX}")
    A(f"v_and_b32 v{T2}, 15, v0")
    A(f"v_xor_b32 v{T2}, v{T2}, v{T1}")
    A(f"v_lshlrev_b32 v{T2}, 4, v{T2}")
    A(f"v_lshl_add_u32 v{BK}, v{T0}, 8, v{T2}")
    A(f"v_bfe_u32 v{T0}, v0, 2, 2")
    A(f"v_mul_u32_u24 v{T0}, 320, v{T0}")
    A(f"v_bfe_u32 v{T2}, v0, 4, 1")
    A(f"v_lshl_add_u32 v{T0}, v{T2}, 5, v{T0}")
    A(f"v_and_b32 v{T2}, 3, v0")
    A(f"v_lshl_add_u32 v{BV}, v{T2}, 3, v{T0}")
    A(f"v_lshl_add_u32 v{BV}, v{T1}, 10, v{BV}")
    A(f"v_and_b32 v{T2}, 1, v0")
    A(f"v_lshl_add_u32 v{BW}, v{T2}, 4, v{T0}")
    A(f"v_bfe_u32 v{T2}, v0, 1, 1")
    A(f"v_lshl_add_u32 v{BW}, v{T2}, 3, v{BW}")
    A(f"v_lshl_add_u32 v{BW}, v{T1}, 11, v{BW}")
    for i in range(64):
        A(f"v_mov_b32 v{O + i}, 0")
    for i in range(4):
        A(f"v_mov_b32 v{ONES + i}, 0x3f803f80")
    A(f"s_mov_b32 s{S_SLOT}, 0")
    A(f"s_mov_b32 s{S_CNT}, 0")
    A(f"s_mov_b32 s{S_C}, {f32hex(SC)}")
    A.wait(lgkm=0)
    srd(A, WS, 18, 19, WS_SIZE)
    ST.stamp()

    def next_slot():
        return [f"s_add_u32 s{S_SLOT}, s{S_SLOT}, {SLOT}",
                f"s_cmp_eq_u32 s{S_SLOT}, {SLOT * NSLOT}",
                f"s_cselect_b32 s{S_SLOT}, 0, s{S_SLOT}"]

    def addr_ops(base, dst, n, step):
        ops = [f"v_add_u32 v{dst}, s{S_SLOT}, v{base}"]
        for i in range(1, n):
            ops.append(f"v_xor_b32 v{dst + i}, {i * step}, v{dst}")
        return ops

    MF = "v_mfma_f32_32x32x16_bf16"
    for t in addr_ops(BX, AD, 4, 32) + addr_ops(BW, AV, 4, 64):
        A(t)
    A.label("L1_xw")
    A("s_barrier")
    ST.stamp(1)
    reads = []
    for ks in range(4):
        reads.append(f"ds_read_b128 {ar(AVF + 4 * ks, 4)}, v{AD + ks}")
        for dt in range(4):
            f = AK + 4 * (4 * ks + dt)
            reads.append(f"ds_read_b64_tr_b16 {ar(f, 2)}, v{AV + dt} offset:{12288 + ks * 4096}")
            reads.append(f"ds_read_b64_tr_b16 {ar(f + 2, 2)}, v{AV + dt} offset:{12288 + ks * 4096 + 1024}")
    mf = [f"{MF} {vr(O + 16 * dt, 16)}, {ar(AK + 4 * (4 * ks + dt), 4)}, {ar(AVF + 4 * ks, 4)}, {vr(O + 16 * dt, 16)}"
          for ks in range(4) for dt in range(4)]
    fill = {-1: reads[:14]}
    last = spread(fill, reads[14:], 0, 3)
    tail = next_slot() + addr_ops(BX, AD, 4, 32) + addr_ops(BW, AV, 4, 64) + [f"s_add_u32 s{S_CNT}, s{S_CNT}, 1"]
    spread(fill, tail, last + 1, 3)
    interleave(A, mf, fill)
    A(f"s_cmp_lt_u32 s{S_CNT}, 9")
    A("s_cbranch_scc1 L1_xw")
    A.check_loop("L1_xw")
    for t in addr_ops(BK, AD, 8, 32):
        A(t)
    for i in range(32):
        A(f"v_cvt_pk_bf16_f32 v{QF + i}, v{O + 2 * i}, v{O + 2 * i + 1}")
    for i in range(64):
        A(f"v_mov_b32 v{O + i}, 0")
    for i in range(16):
        A(f"v_mov_b32 v{L + i}, 0")

    def k_reads():
        return [f"ds_read_b128 {ar(AK + 4 * (8 * kt + ks), 4)}, v{AD + ks} offset:{kt * 8192}"
                for kt in range(2) for ks in range(8)]

    def v_reads(dt_outer=False):
        r = []
        it = [(tp, dt) for tp in range(4) for dt in range(4)]
        if dt_outer:
            it = [(tp, dt) for dt in range(4) for tp in range(4)]
        for tp, dt in it:
            f = AVF + 4 * (4 * tp + dt)
            r.append(f"ds_read_b64_tr_b16 {ar(f, 2)}, v{AV + dt} offset:{16384 + tp * 4096}")
            r.append(f"ds_read_b64_tr_b16 {ar(f + 2, 2)}, v{AV + dt} offset:{16384 + tp * 4096 + 2048}")
        return r

    def qk_mf():
        return [f"{MF} {vr(S + 16 * kt, 16)}, {ar(AK + 4 * (8 * kt + ks), 4)}, {vr(QF + 4 * ks, 4)}, "
                + ("0" if ks == 0 else vr(S + 16 * kt, 16)) for kt in range(2) for ks in range(8)]

    def pv(tp, dt):
        return f"{MF} {vr(O + 16 * dt, 16)}, {ar(AVF + 4 * (4 * tp + dt), 4)}, {vr(P + 4 * tp, 4)}, {vr(O + 16 * dt, 16)}"

    def lm(tp):
        return f"{MF} {vr(L, 16)}, {vr(ONES, 4)}, {vr(P + 4 * tp, 4)}, {vr(L, 16)}"

    def max_ops(kt, first):
        b = S + 16 * kt
        ops = []
        if kt == 0:
            if first:
                ops.append(f"v_max_f32 v{T0}, v{b}, v{b + 1}")
            else:
                ops.append(f"v_max3_f32 v{T0}, v{b}, v{b + 1}, v{M}")
            ops.append(f"v_max_f32 v{T1}, v{b + 2}, v{b + 3}")
            rest = range(4, 16, 2)
        else:
            rest = range(0, 16, 2)
        for n, i in enumerate(rest):
            t = T0 if n % 2 == 0 else T1
            ops.append(f"v_max3_f32 v{t}, v{b + i}, v{b + i + 1}, v{t}")
        return ops

    def max_fin(first):
        ops = [f"v_max_f32 v{T0}, v{T0}, v{T1}",
               f"v_mov_b32 v{T1}, v{T0}",
               f"v_permlane32_swap_b32 v{T0}, v{T1}",
               f"v_max_f32 v{M}, v{T0}, v{T1}"]
        if first:
            ops += [f"v_mul_f32 v{MC}, s{S_C}, v{M}", f"v_mov_b32 v{AL}, 1.0"]
        else:
            ops += [f"v_mov_b32 v{T2}, v{MC}",
                    f"v_mul_f32 v{MC}, s{S_C}, v{M}",
                    f"v_sub_f32 v{T2}, v{T2}, v{MC}",
                    f"v_exp_f32 v{AL}, v{T2}"]
        return ops

    def p_chunk(tp):
        b = S + 8 * tp
        ops = []
        for i in range(8):
            ops.append(f"v_fma_f32 v{b + i}, v{b + i}, s{S_C}, -v{MC}")
        for i in range(8):
            ops.append(f"v_exp_f32 v{b + i}, v{b + i}")
        return ops, [f"v_cvt_pk_bf16_f32 v{P + 4 * tp + i}, v{b + 2 * i}, v{b + 2 * i + 1}" for i in range(4)]

    def rescale():
        return [f"v_mul_f32 v{L}, v{AL}, v{L}"] + [f"v_mul_f32 v{O + i}, v{AL}, v{O + i}" for i in range(64)]

    A("s_barrier")
    ST.stamp()
    kr = k_reads()
    fill = {-1: kr[:10]}
    last = spread(fill, kr[10:], 0, 2)
    spread(fill, next_slot() + addr_ops(BK, AD, 8, 32) + addr_ops(BV, AV, 4, 64), last + 1, 4)
    spread(fill, max_ops(0, True), 11, 2)
    interleave(A, qk_mf(), fill)
    for t in max_ops(1, True) + max_fin(True):
        A(t)
    for tp in range(4):
        a, b = p_chunk(tp)
        for t in a + b:
            A(t)
    A(f"s_mov_b32 s{S_CNT}, 0")
    A.label("L1_kv")
    A("s_barrier")
    ST.stamp()
    kr, vrd, rs = k_reads(), v_reads(), rescale()
    mf = qk_mf()
    for tp in range(4):
        mf += [pv(tp, dt) for dt in range(4)] + [lm(tp)]
    fill = {-1: kr[:8] + rs[:12] + kr[8:12] + rs[12:24]}
    spread(fill, kr[12:] + vrd, 0, 2)
    spread(fill, rs[24:], 0, 4)
    spread(fill, max_ops(0, False), 11, 2)
    last = spread(fill, max_ops(1, False) + max_fin(False), 18, 6)
    s0 = last + 1
    for tp in range(4):
        a, b = p_chunk(tp)
        last = spread(fill, a, s0, 6)
        last = max(last, 20 + 5 * tp)
        last = spread(fill, b, last, 100)
        s0 = last + 1
    tail = next_slot() + addr_ops(BK, AD, 8, 32) + addr_ops(BV, AV, 4, 64) + [f"s_add_u32 s{S_CNT}, s{S_CNT}, 1"]
    over = {k: v for k, v in fill.items() if k >= len(mf)}
    for k in over:
        del fill[k]
    interleave(A, mf, fill)
    for k in sorted(over):
        for t in over[k]:
            A(t)
    for t in tail:
        A(t)
    A(f"s_cmp_lt_u32 s{S_CNT}, 7")
    A("s_cbranch_scc1 L1_kv")
    A.check_loop("L1_kv")
    rs = rescale()
    fill = {-1: rs[:1]}
    spread(fill, rs[1:], 0, 16)
    interleave(A, [lm(tp) for tp in range(4)], fill)
    A(f"v_bfe_u32 v{T0}, v0, 4, 1")
    A(f"v_lshlrev_b32 v{T0}, 17, v{T0}")
    A(f"v_lshrrev_b32 v{T1}, 5, v0")
    A(f"v_lshl_add_u32 v{T0}, v{T1}, 8, v{T0}")
    A(f"v_and_b32 v{T1}, 15, v0")
    A(f"v_lshl_add_u32 v{T0}, v{T1}, 4, v{T0}")
    A(f"s_mul_i32 s{S_T0}, s{S_B}, 6")
    A(f"s_lshl_b32 s{S_T1}, s{S_WAVE}, 1")
    A(f"s_add_u32 s{S_T0}, s{S_T0}, s{S_T1}")
    A(f"s_lshl_b32 s{S_T0}, s{S_T0}, 17")
    A(f"s_lshl_b32 s{S_T1}, s{S_HQ}, 12")
    A(f"s_add_u32 s{S_T0}, s{S_T0}, s{S_T1}")
    if WS_O:
        A(f"s_add_u32 s{S_T0}, s{S_T0}, {WS_O}")
    A(f"v_rcp_f32 v{AL}, v{L}")
    A("s_barrier")
    ST.stamp()
    vrd = v_reads(True)
    mf = [pv(tp, dt) for dt in range(4) for tp in range(4)]
    fill = {-1: vrd[:14]}
    spread(fill, vrd[14:], 0, 3)

    def fin(dt):
        ops = []
        for t in range(2):
            b = O + 16 * dt + 8 * t
            for i in range(8):
                ops.append(f"v_mul_f32 v{b + i}, v{AL}, v{b + i}")
            d = S + 8 * dt + 4 * t
            for i in range(4):
                ops.append(f"v_cvt_pk_bf16_f32 v{d + i}, v{b + 2 * i}, v{b + 2 * i + 1}")
            ops.append(f"buffer_store_dwordx4 {vr(d, 4)}, v{T0}, s[{WS}:{WS + 3}], s{S_T0} offen offset:{dt * 1024 + t * 512}")
        return ops
    for dt in range(3):
        spread(fill, fin(dt), 4 * dt + 6, 7)
    over = {k: v for k, v in fill.items() if k >= len(mf)}
    for k in over:
        del fill[k]
    interleave(A, mf, fill)
    for k in sorted(over):
        for t in over[k]:
            A(t)
    for t in fin(3):
        A(t)
    ST.stamp()
    A(f"s_add_u32 s{S_WAVE}, s{S_WAVE}, 1")
    ST.flush(WS, S_WAVE, 0, 0)
    if STAMPS == 3:
        A("s_cmp_lg_u32 s2, 0")
        A("s_cbranch_scc1 L1_end")
        A(f"s_cmp_lg_u32 s{S_WAVE}, 1")
        A("s_cbranch_scc1 L1_end")
        srd(A, X, 16, 17, 256)
        A(f"buffer_store_dword v250, v251, s[{X}:{X + 3}], 0 offen")
    A.label("L1_end")
    A("s_endpgm")
    desc = dict(name=K, vgpr=(256 + 128 if STAMPS else 192 + 128), accum=(256 if STAMPS else 192), sgpr=72)
    return A, desc


def gen_k2():
    A = Asm()
    K = "k2_kernel"
    U = K2U
    A.raw(f".globl {K}\n.p2align 8\n.type {K},@function\n{K}:")
    S_G, S_J, S_RG, S_CG, S_WAVE, S_T0, S_T1, S_KO, S_CNT, S_BASE = 20, 21, 22, 23, 24, 25, 26, 27, 36, 37
    WS, OS = 28, 32
    S_IDX, S_TM = 38, 40
    VA = 2
    T0, T1 = 8, 9
    ACC = 12
    FR = 48
    A("s_cmp_ge_u32 s2, 192")
    A("s_cbranch_scc1 L2_end")
    A("s_load_dwordx4 s[4:7], s[0:1], 48")
    A("s_load_dwordx2 s[8:9], s[0:1], 40")
    A("v_lshrrev_b32 v1, 6, v0")
    A(f"s_and_b32 s{S_G}, s2, 7")
    A(f"v_readfirstlane_b32 s{S_WAVE}, v1")
    A("v_and_b32 v0, 63, v0")
    ST = Stamper(A, 250, S_IDX, S_TM)
    ST.init()
    A(f"s_lshr_b32 s{S_J}, s2, 3")
    A(f"s_lshr_b32 s{S_T0}, s{S_G}, 1")
    A(f"s_lshl_b32 s{S_T0}, s{S_T0}, 2")
    A(f"s_and_b32 s{S_T1}, s{S_J}, 3")
    A(f"s_add_u32 s{S_RG}, s{S_T0}, s{S_T1}")
    A(f"s_lshl_b32 s{S_KO}, s{S_T1}, 1")
    A(f"s_and_b32 s{S_T0}, s{S_G}, 1")
    A(f"s_mul_i32 s{S_T0}, s{S_T0}, 6")
    A(f"s_lshr_b32 s{S_T1}, s{S_J}, 2")
    A(f"s_add_u32 s{S_CG}, s{S_T0}, s{S_T1}")
    A(f"s_add_u32 s{S_KO}, s{S_KO}, s{S_T1}")
    A(f"s_and_b32 s{S_KO}, s{S_KO}, 7")
    A(f"s_lshl_b32 s{S_KO}, s{S_KO}, 12")
    A(f"s_lshl_b32 s{S_BASE}, s{S_WAVE}, 15")
    A(f"v_lshlrev_b32 v{T0}, 4, v0")
    A(f"s_mul_i32 s{S_T0}, s{S_CG}, {3 * 131072}")
    A(f"s_add_u32 s{S_T0}, s{S_T0}, {WS_WO}")
    A(f"s_add_u32 s{S_T0}, s{S_T0}, s{S_BASE}")
    A(f"v_add_u32 v{VA}, s{S_T0}, v{T0}")
    A(f"v_add_u32 v{VA + 1}, 131072, v{VA}")
    A(f"v_add_u32 v{VA + 2}, 262144, v{VA}")
    A(f"s_mul_i32 s{S_T0}, s{S_RG}, {3 * 131072}")
    if WS_O:
        A(f"s_add_u32 s{S_T0}, s{S_T0}, {WS_O}")
    A(f"s_add_u32 s{S_T0}, s{S_T0}, s{S_BASE}")
    A(f"v_add_u32 v{VA + 3}, s{S_T0}, v{T0}")
    A(f"v_add_u32 v{VA + 4}, 131072, v{VA + 3}")
    A(f"v_add_u32 v{VA + 5}, 262144, v{VA + 3}")
    for i in range(36):
        A(f"v_mov_b32 v{ACC + i}, 0")
    A(f"s_mov_b32 s{S_CNT}, 0")
    A.wait(lgkm=0)
    srd(A, WS, 6, 7, WS_SIZE)
    srd(A, OS, 8, 9, 884736)
    ST.stamp()

    def loads(m):
        return [f"buffer_load_dwordx4 {vr(FR + 24 * m + 4 * i, 4)}, v{VA + i}, s[{WS}:{WS + 3}], s{S_KO} offen offset:{m * 1024}"
                for i in (0, 3, 4, 5, 1, 2)]

    def mfs(m):
        return [f"v_mfma_f32_16x16x32_bf16 {vr(ACC + 4 * (3 * a + b), 4)}, {vr(FR + 24 * m + 4 * a, 4)}, "
                f"{vr(FR + 24 * m + 12 + 4 * b, 4)}, {vr(ACC + 4 * (3 * a + b), 4)}" for a in range(3) for b in range(3)]

    def adv():
        A(f"s_add_u32 s{S_KO}, s{S_KO}, {1024 * U}")
        A(f"s_and_b32 s{S_KO}, s{S_KO}, 0x7fff")
    for m in range(U):
        for t in loads(m):
            A(t)
    adv()
    state0 = [set(x) for x in A.vm]
    A.label("L2_loop")
    for m in range(U):
        for t in mfs(m):
            A(t)
        for t in loads(m):
            A(t)
    adv()
    A(f"s_add_u32 s{S_CNT}, s{S_CNT}, 1")
    A(f"s_cmp_lt_u32 s{S_CNT}, {32 // U - 1}")
    A("s_cbranch_scc1 L2_loop")
    A.check_loop("L2_loop")
    assert [set(x) for x in A.vm] == state0, (A.vm, state0)
    for m in range(U):
        for t in mfs(m):
            A(t)
    ST.stamp()
    A(f"s_mul_i32 s{S_T0}, s{S_WAVE}, 9216")
    A(f"v_add_u32 v{T1}, s{S_T0}, v{T0}")
    for i in range(9):
        A(f"ds_write_b128 v{T1}, {vr(ACC + 4 * i, 4)} offset:{i * 1024}")
    A(f"v_and_b32 v{VA}, 15, v0")
    A(f"v_mul_u32_u24 v{VA}, 1152, v{VA}")
    A(f"v_lshrrev_b32 v{VA + 1}, 4, v0")
    A(f"v_lshl_add_u32 v{VA}, v{VA + 1}, 3, v{VA}")
    A(f"s_mul_i32 s{S_T0}, s{S_RG}, {48 * 1152}")
    A(f"s_mul_i32 s{S_T1}, s{S_CG}, 96")
    A(f"s_add_u32 s{S_BASE}, s{S_T0}, s{S_T1}")
    A(f"s_lshl_b32 s{S_T0}, s{S_WAVE}, 10")
    A(f"v_add_u32 v{T1}, s{S_T0}, v{T0}")
    A.wait(lgkm=0)
    A("s_barrier")
    for rep in range(3):
        if rep == 2:
            A(f"s_cmp_lg_u32 s{S_WAVE}, 0")
            A("s_cbranch_scc1 L2_done")
        for w in range(4):
            A(f"ds_read_b128 {vr(FR + 16 * rep + 4 * w, 4)}, v{T1} offset:{w * 9216 + rep * 4096}")
        A(f"s_add_u32 s{S_T0}, s{S_WAVE}, {4 * rep}")
        A(f"s_mul_i32 s{S_T1}, s{S_T0}, 11")
        A(f"s_lshr_b32 s{S_T1}, s{S_T1}, 5")
        A(f"s_mul_i32 s{S_KO}, s{S_T1}, 3")
        A(f"s_sub_u32 s{S_T0}, s{S_T0}, s{S_KO}")
        A(f"s_mul_i32 s{S_T0}, s{S_T0}, {16 * 1152}")
        A(f"s_lshl_b32 s{S_T1}, s{S_T1}, 5")
        A(f"s_add_u32 s{S_T0}, s{S_T0}, s{S_T1}")
        A(f"s_add_u32 s{S_T0}, s{S_T0}, s{S_BASE}")
        b = FR + 16 * rep
        for r in range(4):
            A(f"v_add_f32 v{b + r}, v{b + r}, v{b + 4 + r}")
            A(f"v_add_f32 v{b + 8 + r}, v{b + 8 + r}, v{b + 12 + r}")
        for r in range(4):
            A(f"v_add_f32 v{b + r}, v{b + r}, v{b + 8 + r}")
        A(f"v_cvt_pk_bf16_f32 v{b}, v{b}, v{b + 1}")
        A(f"v_cvt_pk_bf16_f32 v{b + 1}, v{b + 2}, v{b + 3}")
        A(f"buffer_store_dwordx2 {vr(b, 2)}, v{VA}, s[{OS}:{OS + 3}], s{S_T0} offen")
    A.label("L2_done")
    ST.stamp()
    ST.flush(WS, S_WAVE, 0, 1)
    if STAMPS == 3:
        A("s_cmp_lg_u32 s2, 0")
        A("s_cbranch_scc1 L2_end")
        A(f"s_cmp_lg_u32 s{S_WAVE}, 0")
        A("s_cbranch_scc1 L2_end")
        A(f"s_mov_b32 s{S_T0}, {WS_STAMP + 256}")
        A(f"buffer_load_dword v252, v251, s[{WS}:{WS + 3}], s{S_T0} offen")
        srd(A, OS, 4, 5, 256)
        for i in range(3):
            A(f"v_readlane_b32 s{S_T0}, v250, {i}")
            A("s_nop 4")
            A(f"v_writelane_b32 v252, s{S_T0}, {11 + i}")
        A(f"buffer_store_dword v252, v251, s[{OS}:{OS + 3}], 0 offen")
        if os.environ.get("DIAG"):
            A(f"v_readlane_b32 s{S_T0}, v252, {os.environ['DIAG']}")
            A(f"s_mov_b32 s{S_CNT}, 0")
            A.label("L2_diag")
            A(f"s_memrealtime s[{S_TM}:{S_TM + 1}]")
            A.wait(lgkm=0)
            A(f"s_sub_u32 s{S_T1}, s{S_TM}, s{S_T0}")
            A(f"s_add_u32 s{S_CNT}, s{S_CNT}, 1")
            A(f"s_cmp_gt_u32 s{S_CNT}, 100000")
            A("s_cbranch_scc1 L2_end")
            A(f"s_cmp_lt_u32 s{S_T1}, 10000")
            A("s_cbranch_scc1 L2_diag")
    A.label("L2_end")
    A("s_endpgm")
    nv = max(FR + 24 * U, FR + 48)
    nv = 256 if STAMPS else (nv + 3) // 4 * 4
    desc = dict(name=K, vgpr=nv, accum=nv, sgpr=48)
    return A, desc


def descriptor(d):
    return f""".amdhsa_kernel {d['name']}
  .amdhsa_next_free_vgpr {d['vgpr']}
  .amdhsa_next_free_sgpr {d['sgpr']}
  .amdhsa_accum_offset {d['accum']}
  .amdhsa_group_segment_fixed_size 0
  .amdhsa_kernarg_size 64
  .amdhsa_user_sgpr_count 2
  .amdhsa_user_sgpr_kernarg_segment_ptr 1
  .amdhsa_system_sgpr_workgroup_id_x 1
.end_amdhsa_kernel
"""


def main():
    a1, d1 = gen_k1()
    a2, d2 = gen_k2()
    txt = HEADER
    txt += "; @launch kernel=k1_kernel grid=(256,1,1) block=(256,1,1) lds=163840\n"
    txt += "; @launch kernel=k2_kernel grid=(192,1,1) block=(256,1,1) lds=36864\n"
    for _ in range(int(os.environ.get("EXTRA", "0"))):
        txt += "; @launch kernel=k3_kernel grid=(256,1,1) block=(256,1,1) lds=0\n"
    txt += '.amdgcn_target "amdgcn-amd-amdhsa--gfx950"\n.text\n'
    txt += a1.text() + a2.text()
    if os.environ.get("EXTRA"):
        txt += ".globl k3_kernel\n.p2align 8\n.type k3_kernel,@function\nk3_kernel:\n    s_endpgm\n"
    txt += '.section .rodata,"a"\n.p2align 6\n' + descriptor(d1) + ".p2align 6\n" + descriptor(d2)
    if os.environ.get("EXTRA"):
        txt += ".p2align 6\n" + descriptor(dict(name="k3_kernel", vgpr=8, accum=8, sgpr=16))
    open(OUT, "w").write(txt)
    print("wrote", OUT, "nops k1", a1.nops, "k2", a2.nops)


if __name__ == "__main__":
    main()
```

```python
import math, struct, sys, os
from asmlib import Asm

NAME = "standalone__gqa_block_cached__near_ridge"
STAMPS = int(os.environ.get("STAMPS", "0"))
LOOK = int(os.environ.get("LOOK", "2"))
NT_KV = os.environ.get("NT_KV", " nt")
NT_XW = os.environ.get("NT_XW", " nt")
K2U = int(os.environ.get("K2U", "2"))
OUT = os.environ.get("OUT", f"cdna_kernels/{NAME}.s")

WS_O = 0
WS_WO = 8 << 20
WS_STAMP = 16 << 20
WS_SIZE = 32 << 20
SLOT = 32768
NSLOT = 5


def f32hex(x):
    return "0x%08x" % struct.unpack("<I", struct.pack("<f", x))[0]


SC = math.log2(math.e) / math.sqrt(128.0)

HEADER = """; Kernarg layout for this problem (64 bytes, ptrs only, base s[0:1]):
"""


def vr(a, n=1):
    return f"v{a}" if n == 1 else f"v[{a}:{a + n - 1}]"


def ar(a, n=1):
    return f"a{a}" if n == 1 else f"a[{a}:{a + n - 1}]"


def sr(a, n=1):
    return f"s{a}" if n == 1 else f"s[{a}:{a + n - 1}]"


def srd(A, d, lo, hi, size):
    if lo != d:
        A(f"s_mov_b32 s{d}, s{lo}")
        A(f"s_mov_b32 s{d + 1}, s{hi}")
    if isinstance(size, int):
        A(f"s_mov_b32 s{d + 2}, {size}")
    else:
        A(f"s_mov_b32 s{d + 2}, {size}")
    A(f"s_mov_b32 s{d + 3}, 0x00020000")


class Stamper:
    def __init__(self, A, vt, sidx, stmp):
        self.A, self.vt, self.sidx, self.stmp = A, vt, sidx, stmp

    def entry(self):
        if STAMPS:
            self.A(f"{'s_memrealtime' if STAMPS >= 2 else 's_memtime'} s[{self.stmp + 2}:{self.stmp + 3}]")

    def init(self):
        if STAMPS:
            self.A(f"v_mov_b32 v{self.vt}, 0")
            self.A(f"s_mov_b32 s{self.sidx}, 1")
            self.A.wait(lgkm=0)
            self.A(f"v_writelane_b32 v{self.vt}, s{self.stmp + 2}, 0")

    def stamp(self, lvl=0):
        if STAMPS and not (STAMPS == 3 and lvl):
            A = self.A
            A(f"{'s_memrealtime' if STAMPS >= 2 else 's_memtime'} s[{self.stmp}:{self.stmp + 1}]")
            A.wait(lgkm=0)
            A(f"s_mov_b32 m0, s{self.sidx}")
            A("s_nop 0")
            A(f"v_writelane_b32 v{self.vt}, s{self.stmp}, m0")
            A(f"s_add_u32 s{self.sidx}, s{self.sidx}, 1")

    def flush(self, wssrd, s_wave, vlane, kern):
        if STAMPS:
            A = self.A
            A(f"s_lshl_b32 s{self.stmp}, s2, 3")
            A(f"s_add_u32 s{self.stmp}, s{self.stmp}, s{s_wave}")
            A(f"s_lshl_b32 s{self.stmp}, s{self.stmp}, 8")
            A(f"s_add_u32 s{self.stmp}, s{self.stmp}, {WS_STAMP + kern * (1 << 20)}")
            A(f"v_lshlrev_b32 v{self.vt + 1}, 2, v{vlane}")
            A(f"buffer_store_dword v{self.vt}, v{self.vt + 1}, s[{wssrd}:{wssrd + 3}], s{self.stmp} offen")


def interleave(A, mf, fill):
    for t in fill.get(-1, []):
        A(t)
    for i, m in enumerate(mf):
        A(m)
        for t in fill.get(i, []):
            A(t)


def spread(fill, ops, start, per, cost=None):
    s, acc = start, 0.0
    for o in ops:
        c = 2.0 if o.startswith("v_exp") else 1.0
        if acc + c > per + 1e-9 and acc > 0:
            s += 1
            acc = 0.0
        fill.setdefault(s, []).append(o)
        acc += c
    return s


def gen_k1():
    A = Asm()
    K = "k1_kernel"
    A.raw(f".globl {K}\n.p2align 8\n.type {K},@function\n{K}:")
    S_G, S_J, S_HS, S_B, S_HQ, S_WAVE = 20, 21, 22, 23, 24, 25
    X, KS, VS, WQ, WO, WS = 28, 32, 36, 40, 44, 48
    S_U, S_SLOT, S_KC, S_T0, S_T1, S_KOFF, S_VOFF, S_ROT = 52, 53, 54, 55, 56, 57, 58, 59
    S_CNT, S_C, S_IDX, S_TM = 60, 61, 62, 64
    ST = Stamper(A, 250, S_IDX, S_TM)
    ST.entry()
    A("s_cmp_ge_u32 s2, 256")
    A("s_cbranch_scc1 L1_end")
    A("s_load_dwordx16 s[4:19], s[0:1], 0")
    A("v_lshrrev_b32 v1, 6, v0")
    A(f"s_and_b32 s{S_G}, s2, 7")
    A(f"v_readfirstlane_b32 s{S_WAVE}, v1")
    A(f"s_lshr_b32 s{S_J}, s2, 3")
    A(f"s_and_b32 s{S_HS}, s{S_J}, 3")
    A(f"s_lshr_b32 s{S_B}, s{S_J}, 2")
    A(f"s_lshl_b32 s{S_HQ}, s{S_G}, 2")
    A(f"s_add_u32 s{S_HQ}, s{S_HQ}, s{S_HS}")
    A("v_and_b32 v0, 63, v0")
    ST.init()
    A(f"s_cmp_lg_u32 s{S_WAVE}, 0")
    A("s_cbranch_scc1 L1_compute")

    VX, VW, VK, VV, VO = 2, 6, 10, 14, 16
    T0, T1, T2, T3 = 40, 41, 42, 43
    A(f"v_lshrrev_b32 v{T0}, 4, v0")
    A(f"v_and_b32 v{T1}, 15, v0")
    A(f"v_lshrrev_b32 v{T2}, 3, v0")
    A(f"v_and_b32 v{T3}, 7, v0")
    A(f"v_mul_u32_u24 v{T2}, 1152, v{T2}")
    for m in range(2):
        A(f"v_add_u32 v{VX + m}, {4 * m}, v{T0}")
        A(f"v_xor_b32 v{VX + m}, v{VX + m}, v{T3}")
        A(f"v_lshl_add_u32 v{VX + m}, v{VX + m}, 4, v{T2}")
    A(f"v_add_u32 v{VX + 1}, 8192, v{VX + 1}")
    A(f"v_add_u32 v{VX + 2}, 16384, v{VX + 0}")
    A(f"v_add_u32 v{VX + 3}, 16384, v{VX + 1}")
    A(f"v_lshlrev_b32 v{T2}, 2, v{T0}")
    A(f"v_xor_b32 v{T2}, v{T2}, v{T1}")
    A(f"v_lshlrev_b32 v{T2}, 4, v{T2}")
    A(f"v_lshl_add_u32 v{VW}, v{T0}, 13, v{T2}")
    for m in range(1, 4):
        A(f"v_add_u32 v{VW + m}, {31744 * m}, v{VW}")
    A(f"v_lshl_add_u32 v{VV}, v{T0}, 8, v{T2}")
    for m in range(4):
        A(f"v_add_u32 v{VK + m}, {4 * m}, v{T0}")
        A(f"v_xor_b32 v{VK + m}, v{VK + m}, v{T1}")
        A(f"v_lshlrev_b32 v{VK + m}, 4, v{VK + m}")
        A(f"v_lshl_add_u32 v{VK + m}, v{T0}, 8, v{VK + m}")
    A(f"s_lshl_b32 s{S_KC}, s{S_HS}, 1")
    A(f"s_add_u32 s{S_KC}, s{S_KC}, s{S_B}")
    A(f"s_cmp_ge_u32 s{S_KC}, 9")
    A(f"s_cselect_b32 s{S_T0}, 9, 0")
    A(f"s_sub_u32 s{S_KC}, s{S_KC}, s{S_T0}")
    A(f"s_add_u32 s{S_ROT}, s{S_B}, s{S_G}")
    A(f"s_and_b32 s{S_ROT}, s{S_ROT}, 7")
    A(f"s_lshl_b32 s{S_KOFF}, s{S_ROT}, 14")
    A(f"s_mov_b32 s{S_VOFF}, s{S_KOFF}")
    A(f"s_mov_b32 s{S_U}, 0")
    A(f"s_mov_b32 s{S_SLOT}, 0")
    A.wait(lgkm=0)
    A(f"s_mul_i32 s{S_T0}, s{S_B}, 110592")
    A(f"s_add_u32 s{X}, s4, s{S_T0}")
    A(f"s_addc_u32 s{X + 1}, s5, 0")
    srd(A, X, X, X + 1, 110592)
    A(f"s_lshl_b32 s{S_T0}, s{S_HQ}, 8")
    A(f"s_add_u32 s{WQ}, s10, s{S_T0}")
    A(f"s_addc_u32 s{WQ + 1}, s11, 0")
    A(f"s_sub_u32 s{WQ + 2}, 4718592, s{S_T0}")
    A(f"s_mov_b32 s{WQ + 3}, 0x00020000")
    A(f"s_lshr_b32 s{S_T0}, s{S_HQ}, 1")
    A(f"s_lshl_b32 s{S_T1}, s{S_B}, 4")
    A(f"s_add_u32 s{S_T0}, s{S_T0}, s{S_T1}")
    A(f"s_lshl_b32 s{S_T0}, s{S_T0}, 17")
    A(f"s_add_u32 s{KS}, s6, s{S_T0}")
    A(f"s_addc_u32 s{KS + 1}, s7, 0")
    srd(A, KS, KS, KS + 1, 131072)
    A(f"s_add_u32 s{VS}, s8, s{S_T0}")
    A(f"s_addc_u32 s{VS + 1}, s9, 0")
    srd(A, VS, VS, VS + 1, 131072)
    srd(A, WO, 12, 13, 4718592)
    srd(A, WS, 18, 19, WS_SIZE)
    ST.stamp()

    sizes = [28] * 9 + [16] + [32] * 7 + [16] + [18]
    A.label("L1_ld_loop")
    A(f"s_cmp_lt_u32 s{S_U}, {LOOK}")
    A("s_cbranch_scc1 L1_ld_issue")
    cnts = {}
    for u in range(LOOK, 18 + LOOK):
        t = u - LOOK
        c = sum(sizes[i] for i in range(t + 1, u) if i < len(sizes))
        cnts[u] = min(c, 63)
    runs = []
    for u in sorted(cnts):
        if runs and runs[-1][2] == cnts[u]:
            runs[-1][1] = u
        else:
            runs.append([u, u, cnts[u]])
    for i, (u0, u1, c) in enumerate(runs):
        if i < len(runs) - 1:
            A(f"s_cmp_gt_u32 s{S_U}, {u1}")
            A(f"s_cbranch_scc1 L1_w{i + 1}")
            A.wait(vm=c)
            A("s_branch L1_ld_bar")
            A.label(f"L1_w{i + 1}")
        else:
            A.wait(vm=c)
    A.label("L1_ld_bar")
    ST.stamp()
    A("s_barrier")
    A.label("L1_ld_issue")
    A(f"s_cmp_gt_u32 s{S_U}, 8")
    A("s_cbranch_scc1 L1_ld_kv")
    A(f"s_lshl_b32 s{S_T0}, s{S_KC}, 7")
    A(f"s_lshl_b32 s{S_T1}, s{S_KC}, 19")
    order = [("w", 0), ("x", 0), ("w", 1), ("x", 1), ("w", 2), ("x", 2), ("w", 3)]
    for typ, gi in order:
        if typ == "x":
            A(f"s_add_u32 m0, s{S_SLOT}, {gi * 4096}")
            if gi:
                A(f"s_add_u32 s{S_T0}, s{S_T0}, 36864")
            for m in range(4):
                A(f"buffer_load_dwordx4 v{VX + m}, s[{X}:{X + 3}], s{S_T0} offen offset:{m * 1024}{NT_XW} lds")
        else:
            A(f"s_add_u32 m0, s{S_SLOT}, {12288 + gi * 4096}")
            if gi:
                A(f"s_add_u32 s{S_T1}, s{S_T1}, 131072")
            for m in range(4):
                A(f"buffer_load_dwordx4 v{VW + m}, s[{WQ}:{WQ + 3}], s{S_T1} offen offset:{m * 1024}{NT_XW} lds")
    A(f"s_add_u32 s{S_KC}, s{S_KC}, 1")
    A(f"s_cmp_eq_u32 s{S_KC}, 9")
    A(f"s_cselect_b32 s{S_KC}, 0, s{S_KC}")
    A("s_branch L1_ld_next")
    A.label("L1_ld_kv")
    A(f"s_cmp_gt_u32 s{S_U}, 16")
    A("s_cbranch_scc1 L1_ld_v")
    for gi in range(4):
        A(f"s_add_u32 m0, s{S_SLOT}, {gi * 4096}")
        A(f"s_add_u32 s{S_T0}, s{S_KOFF}, {gi * 4096}")
        for m in range(4):
            A(f"buffer_load_dwordx4 v{VK + m}, s[{KS}:{KS + 3}], s{S_T0} offen offset:{m * 1024}{NT_KV} lds")
    A(f"s_add_u32 s{S_KOFF}, s{S_KOFF}, 16384")
    A(f"s_and_b32 s{S_KOFF}, s{S_KOFF}, 0x1ffff")
    A(f"s_cmp_eq_u32 s{S_U}, 9")
    A("s_cbranch_scc1 L1_ld_next")
    A.label("L1_ld_v")
    A(f"s_cmp_gt_u32 s{S_U}, 17")
    A("s_cbranch_scc1 L1_ld_wo")
    for gi in range(4):
        A(f"s_add_u32 m0, s{S_SLOT}, {16384 + gi * 4096}")
        A(f"s_add_u32 s{S_T0}, s{S_VOFF}, {gi * 4096}")
        for m in range(4):
            A(f"buffer_load_dwordx4 v{VV}, s[{VS}:{VS + 3}], s{S_T0} offen offset:{m * 1024}{NT_KV} lds")
    A(f"s_add_u32 s{S_VOFF}, s{S_VOFF}, 16384")
    A(f"s_and_b32 s{S_VOFF}, s{S_VOFF}, 0x1ffff")
    A("s_branch L1_ld_next")
    A.label("L1_ld_wo")
    A(f"s_cmp_gt_u32 s{S_U}, 18")
    A("s_cbranch_scc1 L1_ld_next")
    WO_SLOT = (18 % NSLOT) * SLOT
    A(f"s_lshl_b32 s{S_T0}, s{S_G}, 4")
    A(f"s_lshr_b32 s{S_T1}, s{S_J}, 1")
    A(f"s_add_u32 s{S_KC}, s{S_T0}, s{S_T1}")
    A(f"s_mul_i32 s{S_T0}, s{S_KC}, {32 * 1152}")
    A(f"s_and_b32 s{S_ROT}, s{S_J}, 1")
    A(f"s_mul_i32 s{S_T1}, s{S_ROT}, 576")
    A(f"s_add_u32 s{S_T0}, s{S_T0}, s{S_T1}")
    A(f"v_lshlrev_b32 v{T1}, 4, v0")
    for i in range(18):
        A(f"v_add_u32 v{T0}, {64 * i}, v0")
        A(f"v_mul_u32_u24 v{T0}, 1821, v{T0}")
        A(f"v_lshrrev_b32 v{T0}, 16, v{T0}")
        A(f"v_mul_u32_u24 v{T0}, 576, v{T0}")
        A(f"v_add_u32 v{VO + i}, v{T0}, v{T1}")
        if i % 4 == 0:
            A(f"s_mov_b32 m0, {WO_SLOT + (i // 4) * 4096}")
            if i:
                A(f"s_add_u32 s{S_T0}, s{S_T0}, 4096")
        A(f"buffer_load_dwordx4 v{VO + i}, s[{WO}:{WO + 3}], s{S_T0} offen offset:{(i % 4) * 1024}{NT_XW} lds")
    A.label("L1_ld_next")
    A(f"s_add_u32 s{S_SLOT}, s{S_SLOT}, {SLOT}")
    A(f"s_cmp_eq_u32 s{S_SLOT}, {SLOT * NSLOT}")
    A(f"s_cselect_b32 s{S_SLOT}, 0, s{S_SLOT}")
    A(f"s_add_u32 s{S_U}, s{S_U}, 1")
    A(f"s_cmp_lt_u32 s{S_U}, {18 + LOOK}")
    A("s_cbranch_scc1 L1_ld_loop")
    A.vm = []
    A(f"v_lshrrev_b32 v{T0}, 5, v0")
    A(f"v_lshlrev_b32 v{T0}, 4, v{T0}")
    A(f"v_bfe_u32 v{T1}, v0, 4, 1")
    A(f"v_lshl_add_u32 v{T0}, v{T1}, 2, v{T0}")
    A(f"v_bfe_u32 v{T1}, v0, 2, 2")
    A(f"v_add_u32 v{T0}, v{T0}, v{T1}")
    A(f"v_mul_u32_u24 v{T0}, 576, v{T0}")
    A(f"v_and_b32 v{T1}, 3, v0")
    A(f"v_lshl_add_u32 v{T0}, v{T1}, 3, v{T0}")
    A(f"v_add_u32 v{T0}, {WO_SLOT}, v{T0}")
    A(f"v_lshlrev_b32 v{T1}, 4, v0")
    A(f"s_mul_i32 s{S_T0}, s{S_ROT}, {18 * 131072}")
    A(f"s_lshl_b32 s{S_T1}, s{S_KC}, 10")
    A(f"s_add_u32 s{S_T0}, s{S_T0}, s{S_T1}")
    A(f"s_add_u32 s{S_T0}, s{S_T0}, {WS_WO}")
    A.wait(vm=0)
    ST.stamp()
    RB = 64
    for cb in range(18):
        A(f"ds_read_b64_tr_b16 {vr(RB + 4 * cb, 2)}, v{T0} offset:{cb * 32}")
        A(f"ds_read_b64_tr_b16 {vr(RB + 4 * cb + 2, 2)}, v{T0} offset:{cb * 32 + 8 * 576}")
    for cb in range(18):
        A(f"buffer_store_dwordx4 {vr(RB + 4 * cb, 4)}, v{T1}, s[{WS}:{WS + 3}], s{S_T0} offen")
        A(f"s_add_u32 s{S_T0}, s{S_T0}, 131072")
    ST.stamp()
    ST.flush(WS, S_WAVE, 0, 0)
    A("s_endpgm")

    A.hist, A.vm, A.lgkm, A.smem_out = [], [], [{("s", i) for i in range(4, 20)}], True
    A.label("L1_compute")
    AD, AV = 2, 10
    BX, BW, BK, BV = 14, 15, 16, 17
    M, MC, AL, T0, T1, T2, T3 = 18, 19, 20, 21, 22, 23, 24
    ONES = 28
    QF, S, P, O, L = 32, 64, 96, 112, 176
    AK, AVF = 0, 64
    A(f"s_sub_u32 s{S_WAVE}, s{S_WAVE}, 1")
    A(f"v_and_b32 v{T0}, 31, v0")
    A(f"v_lshrrev_b32 v{T1}, 5, v0")
    A(f"v_bfe_u32 v{T2}, v0, 1, 3")
    A(f"v_xor_b32 v{T2}, v{T2}, v{T1}")
    A(f"v_lshlrev_b32 v{T2}, 4, v{T2}")
    A(f"v_lshl_add_u32 v{BX}, v{T0}, 7, v{T2}")
    A(f"s_lshl_b32 s{S_T0}, s{S_WAVE}, 12")
    A(f"v_add_u32 v{BX}, s{S_T0}, v{BX}")
    A(f"v_and_b32 v{T2}, 15, v0")
    A(f"v_xor_b32 v{T2}, v{T2}, v{T1}")
    A(f"v_lshlrev_b32 v{T2}, 4, v{T2}")
    A(f"v_lshl_add_u32 v{BK}, v{T0}, 8, v{T2}")
    A(f"v_bfe_u32 v{T0}, v0, 2, 2")
    A(f"v_mul_u32_u24 v{T0}, 320, v{T0}")
    A(f"v_bfe_u32 v{T2}, v0, 4, 1")
    A(f"v_lshl_add_u32 v{T0}, v{T2}, 5, v{T0}")
    A(f"v_and_b32 v{T2}, 3, v0")
    A(f"v_lshl_add_u32 v{BV}, v{T2}, 3, v{T0}")
    A(f"v_lshl_add_u32 v{BV}, v{T1}, 10, v{BV}")
    A(f"v_and_b32 v{T2}, 1, v0")
    A(f"v_lshl_add_u32 v{BW}, v{T2}, 4, v{T0}")
    A(f"v_bfe_u32 v{T2}, v0, 1, 1")
    A(f"v_lshl_add_u32 v{BW}, v{T2}, 3, v{BW}")
    A(f"v_lshl_add_u32 v{BW}, v{T1}, 11, v{BW}")
    for i in range(64):
        A(f"v_mov_b32 v{O + i}, 0")
    for i in range(4):
        A(f"v_mov_b32 v{ONES + i}, 0x3f803f80")
    A(f"s_mov_b32 s{S_SLOT}, 0")
    A(f"s_mov_b32 s{S_CNT}, 0")
    A(f"s_mov_b32 s{S_C}, {f32hex(SC)}")
    A.wait(lgkm=0)
    srd(A, WS, 18, 19, WS_SIZE)
    ST.stamp()

    def next_slot():
        return [f"s_add_u32 s{S_SLOT}, s{S_SLOT}, {SLOT}",
                f"s_cmp_eq_u32 s{S_SLOT}, {SLOT * NSLOT}",
                f"s_cselect_b32 s{S_SLOT}, 0, s{S_SLOT}"]

    def addr_ops(base, dst, n, step):
        ops = [f"v_add_u32 v{dst}, s{S_SLOT}, v{base}"]
        for i in range(1, n):
            ops.append(f"v_xor_b32 v{dst + i}, {i * step}, v{dst}")
        return ops

    MF = "v_mfma_f32_32x32x16_bf16"
    for t in addr_ops(BX, AD, 4, 32) + addr_ops(BW, AV, 4, 64):
        A(t)
    A.label("L1_xw")
    A("s_barrier")
    ST.stamp(1)
    reads = []
    for ks in range(4):
        reads.append(f"ds_read_b128 {ar(AVF + 4 * ks, 4)}, v{AD + ks}")
        for dt in range(4):
            f = AK + 4 * (4 * ks + dt)
            reads.append(f"ds_read_b64_tr_b16 {ar(f, 2)}, v{AV + dt} offset:{12288 + ks * 4096}")
            reads.append(f"ds_read_b64_tr_b16 {ar(f + 2, 2)}, v{AV + dt} offset:{12288 + ks * 4096 + 1024}")
    mf = [f"{MF} {vr(O + 16 * dt, 16)}, {ar(AK + 4 * (4 * ks + dt), 4)}, {ar(AVF + 4 * ks, 4)}, {vr(O + 16 * dt, 16)}"
          for ks in range(4) for dt in range(4)]
    fill = {-1: reads[:14]}
    last = spread(fill, reads[14:], 0, 3)
    tail = next_slot() + addr_ops(BX, AD, 4, 32) + addr_ops(BW, AV, 4, 64) + [f"s_add_u32 s{S_CNT}, s{S_CNT}, 1"]
    spread(fill, tail, last + 1, 3)
    interleave(A, mf, fill)
    A(f"s_cmp_lt_u32 s{S_CNT}, 9")
    A("s_cbranch_scc1 L1_xw")
    A.check_loop("L1_xw")
    for t in addr_ops(BK, AD, 8, 32):
        A(t)
    for i in range(32):
        A(f"v_cvt_pk_bf16_f32 v{QF + i}, v{O + 2 * i}, v{O + 2 * i + 1}")
    for i in range(64):
        A(f"v_mov_b32 v{O + i}, 0")
    for i in range(16):
        A(f"v_mov_b32 v{L + i}, 0")

    def k_reads():
        return [f"ds_read_b128 {ar(AK + 4 * (8 * kt + ks), 4)}, v{AD + ks} offset:{kt * 8192}"
                for kt in range(2) for ks in range(8)]

    def v_reads(dt_outer=False):
        r = []
        it = [(tp, dt) for tp in range(4) for dt in range(4)]
        if dt_outer:
            it = [(tp, dt) for dt in range(4) for tp in range(4)]
        for tp, dt in it:
            f = AVF + 4 * (4 * tp + dt)
            r.append(f"ds_read_b64_tr_b16 {ar(f, 2)}, v{AV + dt} offset:{16384 + tp * 4096}")
            r.append(f"ds_read_b64_tr_b16 {ar(f + 2, 2)}, v{AV + dt} offset:{16384 + tp * 4096 + 2048}")
        return r

    def qk_mf():
        return [f"{MF} {vr(S + 16 * kt, 16)}, {ar(AK + 4 * (8 * kt + ks), 4)}, {vr(QF + 4 * ks, 4)}, "
                + ("0" if ks == 0 else vr(S + 16 * kt, 16)) for kt in range(2) for ks in range(8)]

    def pv(tp, dt):
        return f"{MF} {vr(O + 16 * dt, 16)}, {ar(AVF + 4 * (4 * tp + dt), 4)}, {vr(P + 4 * tp, 4)}, {vr(O + 16 * dt, 16)}"

    def lm(tp):
        return f"{MF} {vr(L, 16)}, {vr(ONES, 4)}, {vr(P + 4 * tp, 4)}, {vr(L, 16)}"

    def max_ops(kt, first):
        b = S + 16 * kt
        ops = []
        if kt == 0:
            if first:
                ops.append(f"v_max_f32 v{T0}, v{b}, v{b + 1}")
            else:
                ops.append(f"v_max3_f32 v{T0}, v{b}, v{b + 1}, v{M}")
            ops.append(f"v_max_f32 v{T1}, v{b + 2}, v{b + 3}")
            rest = range(4, 16, 2)
        else:
            rest = range(0, 16, 2)
        for n, i in enumerate(rest):
            t = T0 if n % 2 == 0 else T1
            ops.append(f"v_max3_f32 v{t}, v{b + i}, v{b + i + 1}, v{t}")
        return ops

    def max_fin(first):
        ops = [f"v_max_f32 v{T0}, v{T0}, v{T1}",
               f"v_mov_b32 v{T1}, v{T0}",
               f"v_permlane32_swap_b32 v{T0}, v{T1}",
               f"v_max_f32 v{M}, v{T0}, v{T1}"]
        if first:
            ops += [f"v_mul_f32 v{MC}, s{S_C}, v{M}", f"v_mov_b32 v{AL}, 1.0"]
        else:
            ops += [f"v_mov_b32 v{T2}, v{MC}",
                    f"v_mul_f32 v{MC}, s{S_C}, v{M}",
                    f"v_sub_f32 v{T2}, v{T2}, v{MC}",
                    f"v_exp_f32 v{AL}, v{T2}"]
        return ops

    def p_chunk(tp):
        b = S + 8 * tp
        ops = []
        for i in range(8):
            ops.append(f"v_fma_f32 v{b + i}, v{b + i}, s{S_C}, -v{MC}")
        for i in range(8):
            ops.append(f"v_exp_f32 v{b + i}, v{b + i}")
        return ops, [f"v_cvt_pk_bf16_f32 v{P + 4 * tp + i}, v{b + 2 * i}, v{b + 2 * i + 1}" for i in range(4)]

    def rescale():
        return [f"v_mul_f32 v{L}, v{AL}, v{L}"] + [f"v_mul_f32 v{O + i}, v{AL}, v{O + i}" for i in range(64)]

    A("s_barrier")
    ST.stamp()
    kr = k_reads()
    fill = {-1: kr[:10]}
    last = spread(fill, kr[10:], 0, 2)
    spread(fill, next_slot() + addr_ops(BK, AD, 8, 32) + addr_ops(BV, AV, 4, 64), last + 1, 4)
    spread(fill, max_ops(0, True), 11, 2)
    interleave(A, qk_mf(), fill)
    for t in max_ops(1, True) + max_fin(True):
        A(t)
    for tp in range(4):
        a, b = p_chunk(tp)
        for t in a + b:
            A(t)
    A(f"s_mov_b32 s{S_CNT}, 0")
    A.label("L1_kv")
    A("s_barrier")
    ST.stamp()
    kr, vrd, rs = k_reads(), v_reads(), rescale()
    mf = qk_mf()
    for tp in range(4):
        mf += [pv(tp, dt) for dt in range(4)] + [lm(tp)]
    fill = {-1: kr[:8] + rs[:12] + kr[8:12] + rs[12:24]}
    spread(fill, kr[12:] + vrd, 0, 2)
    spread(fill, rs[24:], 0, 4)
    spread(fill, max_ops(0, False), 11, 2)
    last = spread(fill, max_ops(1, False) + max_fin(False), 18, 6)
    s0 = last + 1
    for tp in range(4):
        a, b = p_chunk(tp)
        last = spread(fill, a, s0, 6)
        last = max(last, 20 + 5 * tp)
        last = spread(fill, b, last, 100)
        s0 = last + 1
    tail = next_slot() + addr_ops(BK, AD, 8, 32) + addr_ops(BV, AV, 4, 64) + [f"s_add_u32 s{S_CNT}, s{S_CNT}, 1"]
    over = {k: v for k, v in fill.items() if k >= len(mf)}
    for k in over:
        del fill[k]
    interleave(A, mf, fill)
    for k in sorted(over):
        for t in over[k]:
            A(t)
    for t in tail:
        A(t)
    A(f"s_cmp_lt_u32 s{S_CNT}, 7")
    A("s_cbranch_scc1 L1_kv")
    A.check_loop("L1_kv")
    rs = rescale()
    fill = {-1: rs[:1]}
    spread(fill, rs[1:], 0, 16)
    interleave(A, [lm(tp) for tp in range(4)], fill)
    A(f"v_bfe_u32 v{T0}, v0, 4, 1")
    A(f"v_lshlrev_b32 v{T0}, 17, v{T0}")
    A(f"v_lshrrev_b32 v{T1}, 5, v0")
    A(f"v_lshl_add_u32 v{T0}, v{T1}, 8, v{T0}")
    A(f"v_and_b32 v{T1}, 15, v0")
    A(f"v_lshl_add_u32 v{T0}, v{T1}, 4, v{T0}")
    A(f"s_mul_i32 s{S_T0}, s{S_B}, 6")
    A(f"s_lshl_b32 s{S_T1}, s{S_WAVE}, 1")
    A(f"s_add_u32 s{S_T0}, s{S_T0}, s{S_T1}")
    A(f"s_lshl_b32 s{S_T0}, s{S_T0}, 17")
    A(f"s_lshl_b32 s{S_T1}, s{S_HQ}, 12")
    A(f"s_add_u32 s{S_T0}, s{S_T0}, s{S_T1}")
    if WS_O:
        A(f"s_add_u32 s{S_T0}, s{S_T0}, {WS_O}")
    A(f"v_rcp_f32 v{AL}, v{L}")
    A("s_barrier")
    ST.stamp()
    vrd = v_reads(True)
    mf = [pv(tp, dt) for dt in range(4) for tp in range(4)]
    fill = {-1: vrd[:14]}
    spread(fill, vrd[14:], 0, 3)

    def fin(dt):
        ops = []
        for t in range(2):
            b = O + 16 * dt + 8 * t
            for i in range(8):
                ops.append(f"v_mul_f32 v{b + i}, v{AL}, v{b + i}")
            d = S + 8 * dt + 4 * t
            for i in range(4):
                ops.append(f"v_cvt_pk_bf16_f32 v{d + i}, v{b + 2 * i}, v{b + 2 * i + 1}")
            ops.append(f"buffer_store_dwordx4 {vr(d, 4)}, v{T0}, s[{WS}:{WS + 3}], s{S_T0} offen offset:{dt * 1024 + t * 512}")
        return ops
    for dt in range(3):
        spread(fill, fin(dt), 4 * dt + 6, 7)
    over = {k: v for k, v in fill.items() if k >= len(mf)}
    for k in over:
        del fill[k]
    interleave(A, mf, fill)
    for k in sorted(over):
        for t in over[k]:
            A(t)
    for t in fin(3):
        A(t)
    ST.stamp()
    A(f"s_add_u32 s{S_WAVE}, s{S_WAVE}, 1")
    ST.flush(WS, S_WAVE, 0, 0)
    if STAMPS == 3:
        A("s_cmp_lg_u32 s2, 0")
        A("s_cbranch_scc1 L1_end")
        A(f"s_cmp_lg_u32 s{S_WAVE}, 1")
        A("s_cbranch_scc1 L1_end")
        srd(A, X, 16, 17, 256)
        A(f"buffer_store_dword v250, v251, s[{X}:{X + 3}], 0 offen")
    A.label("L1_end")
    A("s_endpgm")
    desc = dict(name=K, vgpr=(256 + 128 if STAMPS else 192 + 128), accum=(256 if STAMPS else 192), sgpr=72)
    return A, desc


def gen_k2():
    A = Asm()
    K = "k2_kernel"
    U = K2U
    A.raw(f".globl {K}\n.p2align 8\n.type {K},@function\n{K}:")
    S_G, S_J, S_RG, S_CG, S_WAVE, S_T0, S_T1, S_KO, S_CNT, S_BASE = 20, 21, 22, 23, 24, 25, 26, 27, 36, 37
    WS, OS = 28, 32
    S_IDX, S_TM = 38, 40
    VA = 2
    T0, T1 = 8, 9
    ACC = 12
    FR = 48
    ST = Stamper(A, 250, S_IDX, S_TM)
    ST.entry()
    A("s_cmp_ge_u32 s2, 192")
    A("s_cbranch_scc1 L2_end")
    A("s_load_dwordx4 s[4:7], s[0:1], 48")
    A("s_load_dwordx2 s[8:9], s[0:1], 40")
    A("v_lshrrev_b32 v1, 6, v0")
    A(f"s_and_b32 s{S_G}, s2, 7")
    A(f"v_readfirstlane_b32 s{S_WAVE}, v1")
    A("v_and_b32 v0, 63, v0")
    ST.init()
    A(f"s_lshr_b32 s{S_J}, s2, 3")
    A(f"s_lshr_b32 s{S_T0}, s{S_G}, 1")
    A(f"s_lshl_b32 s{S_T0}, s{S_T0}, 2")
    A(f"s_and_b32 s{S_T1}, s{S_J}, 3")
    A(f"s_add_u32 s{S_RG}, s{S_T0}, s{S_T1}")
    A(f"s_lshl_b32 s{S_KO}, s{S_T1}, 1")
    A(f"s_and_b32 s{S_T0}, s{S_G}, 1")
    A(f"s_mul_i32 s{S_T0}, s{S_T0}, 6")
    A(f"s_lshr_b32 s{S_T1}, s{S_J}, 2")
    A(f"s_add_u32 s{S_CG}, s{S_T0}, s{S_T1}")
    A(f"s_add_u32 s{S_KO}, s{S_KO}, s{S_T1}")
    A(f"s_and_b32 s{S_KO}, s{S_KO}, 7")
    A(f"s_lshl_b32 s{S_KO}, s{S_KO}, 12")
    A(f"s_lshl_b32 s{S_BASE}, s{S_WAVE}, 15")
    A(f"v_lshlrev_b32 v{T0}, 4, v0")
    A(f"s_mul_i32 s{S_T0}, s{S_CG}, {3 * 131072}")
    A(f"s_add_u32 s{S_T0}, s{S_T0}, {WS_WO}")
    A(f"s_add_u32 s{S_T0}, s{S_T0}, s{S_BASE}")
    A(f"v_add_u32 v{VA}, s{S_T0}, v{T0}")
    A(f"v_add_u32 v{VA + 1}, 131072, v{VA}")
    A(f"v_add_u32 v{VA + 2}, 262144, v{VA}")
    A(f"s_mul_i32 s{S_T0}, s{S_RG}, {3 * 131072}")
    if WS_O:
        A(f"s_add_u32 s{S_T0}, s{S_T0}, {WS_O}")
    A(f"s_add_u32 s{S_T0}, s{S_T0}, s{S_BASE}")
    A(f"v_add_u32 v{VA + 3}, s{S_T0}, v{T0}")
    A(f"v_add_u32 v{VA + 4}, 131072, v{VA + 3}")
    A(f"v_add_u32 v{VA + 5}, 262144, v{VA + 3}")
    for i in range(36):
        A(f"v_mov_b32 v{ACC + i}, 0")
    A(f"s_mov_b32 s{S_CNT}, 0")
    A.wait(lgkm=0)
    srd(A, WS, 6, 7, WS_SIZE)
    srd(A, OS, 8, 9, 884736)
    ST.stamp()

    def loads(m):
        return [f"buffer_load_dwordx4 {vr(FR + 24 * m + 4 * i, 4)}, v{VA + i}, s[{WS}:{WS + 3}], s{S_KO} offen offset:{m * 1024}"
                for i in (0, 3, 4, 5, 1, 2)]

    def mfs(m):
        return [f"v_mfma_f32_16x16x32_bf16 {vr(ACC + 4 * (3 * a + b), 4)}, {vr(FR + 24 * m + 4 * a, 4)}, "
                f"{vr(FR + 24 * m + 12 + 4 * b, 4)}, {vr(ACC + 4 * (3 * a + b), 4)}" for a in range(3) for b in range(3)]

    def adv():
        A(f"s_add_u32 s{S_KO}, s{S_KO}, {1024 * U}")
        A(f"s_and_b32 s{S_KO}, s{S_KO}, 0x7fff")
    for m in range(U):
        for t in loads(m):
            A(t)
    adv()
    state0 = [set(x) for x in A.vm]
    A.label("L2_loop")
    for m in range(U):
        for t in mfs(m):
            A(t)
        for t in loads(m):
            A(t)
    adv()
    A(f"s_add_u32 s{S_CNT}, s{S_CNT}, 1")
    A(f"s_cmp_lt_u32 s{S_CNT}, {32 // U - 1}")
    A("s_cbranch_scc1 L2_loop")
    A.check_loop("L2_loop")
    assert [set(x) for x in A.vm] == state0, (A.vm, state0)
    for m in range(U):
        for t in mfs(m):
            A(t)
    ST.stamp()
    A(f"s_mul_i32 s{S_T0}, s{S_WAVE}, 9216")
    A(f"v_add_u32 v{T1}, s{S_T0}, v{T0}")
    for i in range(9):
        A(f"ds_write_b128 v{T1}, {vr(ACC + 4 * i, 4)} offset:{i * 1024}")
    A(f"v_and_b32 v{VA}, 15, v0")
    A(f"v_mul_u32_u24 v{VA}, 1152, v{VA}")
    A(f"v_lshrrev_b32 v{VA + 1}, 4, v0")
    A(f"v_lshl_add_u32 v{VA}, v{VA + 1}, 3, v{VA}")
    A(f"s_mul_i32 s{S_T0}, s{S_RG}, {48 * 1152}")
    A(f"s_mul_i32 s{S_T1}, s{S_CG}, 96")
    A(f"s_add_u32 s{S_BASE}, s{S_T0}, s{S_T1}")
    A(f"s_lshl_b32 s{S_T0}, s{S_WAVE}, 10")
    A(f"v_add_u32 v{T1}, s{S_T0}, v{T0}")
    A.wait(lgkm=0)
    A("s_barrier")
    for rep in range(3):
        if rep == 2:
            A(f"s_cmp_lg_u32 s{S_WAVE}, 0")
            A("s_cbranch_scc1 L2_done")
        for w in range(4):
            A(f"ds_read_b128 {vr(FR + 16 * rep + 4 * w, 4)}, v{T1} offset:{w * 9216 + rep * 4096}")
        A(f"s_add_u32 s{S_T0}, s{S_WAVE}, {4 * rep}")
        A(f"s_mul_i32 s{S_T1}, s{S_T0}, 11")
        A(f"s_lshr_b32 s{S_T1}, s{S_T1}, 5")
        A(f"s_mul_i32 s{S_KO}, s{S_T1}, 3")
        A(f"s_sub_u32 s{S_T0}, s{S_T0}, s{S_KO}")
        A(f"s_mul_i32 s{S_T0}, s{S_T0}, {16 * 1152}")
        A(f"s_lshl_b32 s{S_T1}, s{S_T1}, 5")
        A(f"s_add_u32 s{S_T0}, s{S_T0}, s{S_T1}")
        A(f"s_add_u32 s{S_T0}, s{S_T0}, s{S_BASE}")
        b = FR + 16 * rep
        for r in range(4):
            A(f"v_add_f32 v{b + r}, v{b + r}, v{b + 4 + r}")
            A(f"v_add_f32 v{b + 8 + r}, v{b + 8 + r}, v{b + 12 + r}")
        for r in range(4):
            A(f"v_add_f32 v{b + r}, v{b + r}, v{b + 8 + r}")
        A(f"v_cvt_pk_bf16_f32 v{b}, v{b}, v{b + 1}")
        A(f"v_cvt_pk_bf16_f32 v{b + 1}, v{b + 2}, v{b + 3}")
        A(f"buffer_store_dwordx2 {vr(b, 2)}, v{VA}, s[{OS}:{OS + 3}], s{S_T0} offen")
    A.label("L2_done")
    ST.stamp()
    ST.flush(WS, S_WAVE, 0, 1)
    if STAMPS == 3:
        A("s_cmp_lg_u32 s2, 0")
        A("s_cbranch_scc1 L2_end")
        A(f"s_cmp_lg_u32 s{S_WAVE}, 0")
        A("s_cbranch_scc1 L2_end")
        A(f"s_mov_b32 s{S_T0}, {WS_STAMP + 256}")
        A(f"buffer_load_dword v252, v251, s[{WS}:{WS + 3}], s{S_T0} offen")
        srd(A, OS, 4, 5, 256)
        for i in range(4):
            A(f"v_readlane_b32 s{S_T0}, v250, {i}")
            A("s_nop 4")
            A(f"v_writelane_b32 v252, s{S_T0}, {12 + i}")
        A(f"buffer_store_dword v252, v251, s[{OS}:{OS + 3}], 0 offen")
        if os.environ.get("DIAG"):
            A(f"v_readlane_b32 s{S_T0}, v252, {os.environ['DIAG']}")
            A(f"s_mov_b32 s{S_CNT}, 0")
            A.label("L2_diag")
            A(f"s_memrealtime s[{S_TM}:{S_TM + 1}]")
            A.wait(lgkm=0)
            A(f"s_sub_u32 s{S_T1}, s{S_TM}, s{S_T0}")
            A(f"s_add_u32 s{S_CNT}, s{S_CNT}, 1")
            A(f"s_cmp_gt_u32 s{S_CNT}, 100000")
            A("s_cbranch_scc1 L2_end")
            A(f"s_cmp_lt_u32 s{S_T1}, 10000")
            A("s_cbranch_scc1 L2_diag")
    A.label("L2_end")
    A("s_endpgm")
    nv = max(FR + 24 * U, FR + 48)
    nv = 256 if STAMPS else (nv + 3) // 4 * 4
    desc = dict(name=K, vgpr=nv, accum=nv, sgpr=48)
    return A, desc


def descriptor(d):
    return f""".amdhsa_kernel {d['name']}
  .amdhsa_next_free_vgpr {d['vgpr']}
  .amdhsa_next_free_sgpr {d['sgpr']}
  .amdhsa_accum_offset {d['accum']}
  .amdhsa_group_segment_fixed_size 0
  .amdhsa_kernarg_size 64
  .amdhsa_user_sgpr_count 2
  .amdhsa_user_sgpr_kernarg_segment_ptr 1
  .amdhsa_system_sgpr_workgroup_id_x 1
.end_amdhsa_kernel
"""


def main():
    a1, d1 = gen_k1()
    a2, d2 = gen_k2()
    txt = HEADER
    txt += "; @launch kernel=k1_kernel grid=(256,1,1) block=(256,1,1) lds=163840\n"
    txt += "; @launch kernel=k2_kernel grid=(192,1,1) block=(256,1,1) lds=36864\n"
    for _ in range(int(os.environ.get("EXTRA", "0"))):
        txt += "; @launch kernel=k3_kernel grid=(256,1,1) block=(256,1,1) lds=0\n"
    txt += '.amdgcn_target "amdgcn-amd-amdhsa--gfx950"\n.text\n'
    txt += a1.text() + a2.text()
    if os.environ.get("EXTRA"):
        txt += ".globl k3_kernel\n.p2align 8\n.type k3_kernel,@function\nk3_kernel:\n    s_endpgm\n"
    txt += '.section .rodata,"a"\n.p2align 6\n' + descriptor(d1) + ".p2align 6\n" + descriptor(d2)
    if os.environ.get("EXTRA"):
        txt += ".p2align 6\n" + descriptor(dict(name="k3_kernel", vgpr=8, accum=8, sgpr=16))
    open(OUT, "w").write(txt)
    print("wrote", OUT, "nops k1", a1.nops, "k2", a2.nops)


if __name__ == "__main__":
    main()
```

```python
import math, struct, sys, os
from asmlib import Asm

NAME = "standalone__gqa_block_cached__near_ridge"
STAMPS = int(os.environ.get("STAMPS", "0"))
LOOK = int(os.environ.get("LOOK", "2"))
NT_KV = os.environ.get("NT_KV", " nt")
NT_XW = os.environ.get("NT_XW", " nt")
O_POL = os.environ.get("O_POL", "")
K2U = int(os.environ.get("K2U", "2"))
OUT = os.environ.get("OUT", f"cdna_kernels/{NAME}.s")

WS_O = 0
WS_WO = 8 << 20
WS_STAMP = 16 << 20
WS_SIZE = 32 << 20
SLOT = 32768
NSLOT = 5


def f32hex(x):
    return "0x%08x" % struct.unpack("<I", struct.pack("<f", x))[0]


SC = math.log2(math.e) / math.sqrt(128.0)

HEADER = """; Kernarg layout for this problem (64 bytes, ptrs only, base s[0:1]):
"""


def vr(a, n=1):
    return f"v{a}" if n == 1 else f"v[{a}:{a + n - 1}]"


def ar(a, n=1):
    return f"a{a}" if n == 1 else f"a[{a}:{a + n - 1}]"


def sr(a, n=1):
    return f"s{a}" if n == 1 else f"s[{a}:{a + n - 1}]"


def srd(A, d, lo, hi, size):
    if lo != d:
        A(f"s_mov_b32 s{d}, s{lo}")
        A(f"s_mov_b32 s{d + 1}, s{hi}")
    if isinstance(size, int):
        A(f"s_mov_b32 s{d + 2}, {size}")
    else:
        A(f"s_mov_b32 s{d + 2}, {size}")
    A(f"s_mov_b32 s{d + 3}, 0x00020000")


class Stamper:
    def __init__(self, A, vt, sidx, stmp):
        self.A, self.vt, self.sidx, self.stmp = A, vt, sidx, stmp

    def entry(self):
        if STAMPS:
            self.A(f"{'s_memrealtime' if STAMPS >= 2 else 's_memtime'} s[{self.stmp + 2}:{self.stmp + 3}]")

    def init(self):
        if STAMPS:
            self.A(f"v_mov_b32 v{self.vt}, 0")
            self.A(f"s_mov_b32 s{self.sidx}, 1")
            self.A.wait(lgkm=0)
            self.A(f"v_writelane_b32 v{self.vt}, s{self.stmp + 2}, 0")

    def stamp(self, lvl=0):
        if STAMPS and not (STAMPS == 3 and lvl):
            A = self.A
            A(f"{'s_memrealtime' if STAMPS >= 2 else 's_memtime'} s[{self.stmp}:{self.stmp + 1}]")
            A.wait(lgkm=0)
            A(f"s_mov_b32 m0, s{self.sidx}")
            A("s_nop 0")
            A(f"v_writelane_b32 v{self.vt}, s{self.stmp}, m0")
            A(f"s_add_u32 s{self.sidx}, s{self.sidx}, 1")

    def flush(self, wssrd, s_wave, vlane, kern):
        if STAMPS:
            A = self.A
            A(f"s_lshl_b32 s{self.stmp}, s2, 3")
            A(f"s_add_u32 s{self.stmp}, s{self.stmp}, s{s_wave}")
            A(f"s_lshl_b32 s{self.stmp}, s{self.stmp}, 8")
            A(f"s_add_u32 s{self.stmp}, s{self.stmp}, {WS_STAMP + kern * (1 << 20)}")
            A(f"v_lshlrev_b32 v{self.vt + 1}, 2, v{vlane}")
            A(f"buffer_store_dword v{self.vt}, v{self.vt + 1}, s[{wssrd}:{wssrd + 3}], s{self.stmp} offen")


def interleave(A, mf, fill):
    for t in fill.get(-1, []):
        A(t)
    for i, m in enumerate(mf):
        A(m)
        for t in fill.get(i, []):
            if t.startswith("WAIT"):
                A.wait(lgkm=int(t[4:]))
            else:
                A(t)


def spread(fill, ops, start, per, cost=None):
    s, acc = start, 0.0
    for o in ops:
        c = 2.0 if o.startswith("v_exp") else 1.0
        if acc + c > per + 1e-9 and acc > 0:
            s += 1
            acc = 0.0
        fill.setdefault(s, []).append(o)
        acc += c
    return s


def cost_of(o):
    return 2.0 if o.startswith("v_exp") else 1.0


def sched(nslots, streams, budget=6.0, pre=None):
    fill = {}
    used = dict(pre or {})
    pos = [0] * len(streams)
    for s_ in range(-1, nslots):
        b = budget - used.get(s_, 0.0)
        if s_ == -1:
            b = used.get("head", 0.0)
        lastk = None
        while True:
            best, bu = None, -1
            for k, (ops, f, l) in enumerate(streams):
                if pos[k] >= len(ops) or s_ < f:
                    continue
                rem = sum(cost_of(o) for o in ops[pos[k]:])
                u = rem / max(l - s_ + 1, 1e-3)
                if k == lastk:
                    u *= 0.7
                if u > bu:
                    best, bu = k, u
            if best is None:
                break
            ops, f, l = streams[best]
            c = cost_of(ops[pos[best]])
            if c > b + 0.01 and s_ < l:
                dl = [k for k, (o2, f2, l2) in enumerate(streams) if pos[k] < len(o2) and l2 <= s_ and f2 <= s_]
                if not dl:
                    alt = [k for k, (o2, f2, l2) in enumerate(streams)
                           if pos[k] < len(o2) and f2 <= s_ and cost_of(o2[pos[k]]) <= b + 0.01]
                    if not alt:
                        break
                    best = alt[0]
                else:
                    best = dl[0]
                ops, f, l = streams[best]
                c = cost_of(ops[pos[best]])
            fill.setdefault(s_, []).append(ops[pos[best]])
            pos[best] += 1
            b -= c
            lastk = best
    for k, (ops, f, l) in enumerate(streams):
        assert pos[k] == len(ops), (k, pos[k], len(ops))
    return fill


def gen_k1():
    A = Asm()
    K = "k1_kernel"
    A.raw(f".globl {K}\n.p2align 8\n.type {K},@function\n{K}:")
    S_G, S_J, S_HS, S_B, S_HQ, S_WAVE = 20, 21, 22, 23, 24, 25
    X, KS, VS, WQ, WO, WS = 28, 32, 36, 40, 44, 48
    S_U, S_SLOT, S_KC, S_T0, S_T1, S_KOFF, S_VOFF, S_ROT = 52, 53, 54, 55, 56, 57, 58, 59
    S_CNT, S_C, S_IDX, S_TM = 60, 61, 62, 64
    ST = Stamper(A, 26, S_IDX, S_TM)
    ST.entry()
    A("s_cmp_ge_u32 s2, 256")
    A("s_cbranch_scc1 L1_end")
    A("s_load_dwordx16 s[4:19], s[0:1], 0")
    A("v_lshrrev_b32 v1, 6, v0")
    A(f"s_and_b32 s{S_G}, s2, 7")
    A(f"v_readfirstlane_b32 s{S_WAVE}, v1")
    A(f"s_lshr_b32 s{S_J}, s2, 3")
    A(f"s_and_b32 s{S_HS}, s{S_J}, 3")
    A(f"s_lshr_b32 s{S_B}, s{S_J}, 2")
    A(f"s_lshl_b32 s{S_HQ}, s{S_G}, 2")
    A(f"s_add_u32 s{S_HQ}, s{S_HQ}, s{S_HS}")
    A("v_and_b32 v0, 63, v0")
    ST.init()
    A(f"s_cmp_lg_u32 s{S_WAVE}, 0")
    A("s_cbranch_scc1 L1_compute")

    VX, VW, VK, VV, VO = 2, 6, 10, 14, 44
    T0, T1, T2, T3 = 40, 41, 42, 43
    A(f"v_lshrrev_b32 v{T0}, 4, v0")
    A(f"v_and_b32 v{T1}, 15, v0")
    A(f"v_lshrrev_b32 v{T2}, 3, v0")
    A(f"v_and_b32 v{T3}, 7, v0")
    A(f"v_mul_u32_u24 v{T2}, 1152, v{T2}")
    for m in range(2):
        A(f"v_add_u32 v{VX + m}, {4 * m}, v{T0}")
        A(f"v_xor_b32 v{VX + m}, v{VX + m}, v{T3}")
        A(f"v_lshl_add_u32 v{VX + m}, v{VX + m}, 4, v{T2}")
    A(f"v_add_u32 v{VX + 1}, 8192, v{VX + 1}")
    A(f"v_add_u32 v{VX + 2}, 16384, v{VX + 0}")
    A(f"v_add_u32 v{VX + 3}, 16384, v{VX + 1}")
    A(f"v_lshlrev_b32 v{T2}, 2, v{T0}")
    A(f"v_xor_b32 v{T2}, v{T2}, v{T1}")
    A(f"v_lshlrev_b32 v{T2}, 4, v{T2}")
    A(f"v_lshl_add_u32 v{VW}, v{T0}, 13, v{T2}")
    for m in range(1, 4):
        A(f"v_add_u32 v{VW + m}, {31744 * m}, v{VW}")
    A(f"v_lshl_add_u32 v{VV}, v{T0}, 8, v{T2}")
    for m in range(4):
        A(f"v_add_u32 v{VK + m}, {4 * m}, v{T0}")
        A(f"v_xor_b32 v{VK + m}, v{VK + m}, v{T1}")
        A(f"v_lshlrev_b32 v{VK + m}, 4, v{VK + m}")
        A(f"v_lshl_add_u32 v{VK + m}, v{T0}, 8, v{VK + m}")
    A(f"s_lshl_b32 s{S_KC}, s{S_HS}, 1")
    A(f"s_add_u32 s{S_KC}, s{S_KC}, s{S_B}")
    A(f"s_cmp_ge_u32 s{S_KC}, 9")
    A(f"s_cselect_b32 s{S_T0}, 9, 0")
    A(f"s_sub_u32 s{S_KC}, s{S_KC}, s{S_T0}")
    A(f"s_add_u32 s{S_ROT}, s{S_B}, s{S_G}")
    A(f"s_and_b32 s{S_ROT}, s{S_ROT}, 7")
    A(f"s_lshl_b32 s{S_KOFF}, s{S_ROT}, 14")
    A(f"s_mov_b32 s{S_VOFF}, s{S_KOFF}")
    A(f"s_mov_b32 s{S_U}, 0")
    A(f"s_mov_b32 s{S_SLOT}, 0")
    A.wait(lgkm=0)
    A(f"s_mul_i32 s{S_T0}, s{S_B}, 110592")
    A(f"s_add_u32 s{X}, s4, s{S_T0}")
    A(f"s_addc_u32 s{X + 1}, s5, 0")
    srd(A, X, X, X + 1, 110592)
    A(f"s_lshl_b32 s{S_T0}, s{S_HQ}, 8")
    A(f"s_add_u32 s{WQ}, s10, s{S_T0}")
    A(f"s_addc_u32 s{WQ + 1}, s11, 0")
    A(f"s_sub_u32 s{WQ + 2}, 4718592, s{S_T0}")
    A(f"s_mov_b32 s{WQ + 3}, 0x00020000")
    A(f"s_lshr_b32 s{S_T0}, s{S_HQ}, 1")
    A(f"s_lshl_b32 s{S_T1}, s{S_B}, 4")
    A(f"s_add_u32 s{S_T0}, s{S_T0}, s{S_T1}")
    A(f"s_lshl_b32 s{S_T0}, s{S_T0}, 17")
    A(f"s_add_u32 s{KS}, s6, s{S_T0}")
    A(f"s_addc_u32 s{KS + 1}, s7, 0")
    srd(A, KS, KS, KS + 1, 131072)
    A(f"s_add_u32 s{VS}, s8, s{S_T0}")
    A(f"s_addc_u32 s{VS + 1}, s9, 0")
    srd(A, VS, VS, VS + 1, 131072)
    srd(A, WO, 12, 13, 4718592)
    srd(A, WS, 18, 19, WS_SIZE)
    ST.stamp()

    sizes = [28] * 9 + [16] + [32] * 7 + [16] + [18]
    A.label("L1_ld_loop")
    A(f"s_cmp_lt_u32 s{S_U}, {LOOK}")
    A("s_cbranch_scc1 L1_ld_issue")
    cnts = {}
    for u in range(LOOK, 18 + LOOK):
        t = u - LOOK
        c = sum(sizes[i] for i in range(t + 1, u) if i < len(sizes))
        cnts[u] = min(c, 63)
    runs = []
    for u in sorted(cnts):
        if runs and runs[-1][2] == cnts[u]:
            runs[-1][1] = u
        else:
            runs.append([u, u, cnts[u]])
    for i, (u0, u1, c) in enumerate(runs):
        if i < len(runs) - 1:
            A(f"s_cmp_gt_u32 s{S_U}, {u1}")
            A(f"s_cbranch_scc1 L1_w{i + 1}")
            A.wait(vm=c)
            A("s_branch L1_ld_bar")
            A.label(f"L1_w{i + 1}")
        else:
            A.wait(vm=c)
    A.label("L1_ld_bar")
    ST.stamp()
    A("s_barrier")
    A.label("L1_ld_issue")
    A(f"s_cmp_gt_u32 s{S_U}, 8")
    A("s_cbranch_scc1 L1_ld_kv")
    A(f"s_lshl_b32 s{S_T0}, s{S_KC}, 7")
    A(f"s_lshl_b32 s{S_T1}, s{S_KC}, 19")
    order = [("w", 0), ("x", 0), ("w", 1), ("x", 1), ("w", 2), ("x", 2), ("w", 3)]
    for typ, gi in order:
        if typ == "x":
            A(f"s_add_u32 m0, s{S_SLOT}, {gi * 4096}")
            if gi:
                A(f"s_add_u32 s{S_T0}, s{S_T0}, 36864")
            for m in range(4):
                A(f"buffer_load_dwordx4 v{VX + m}, s[{X}:{X + 3}], s{S_T0} offen offset:{m * 1024}{NT_XW} lds")
        else:
            A(f"s_add_u32 m0, s{S_SLOT}, {12288 + gi * 4096}")
            if gi:
                A(f"s_add_u32 s{S_T1}, s{S_T1}, 131072")
            for m in range(4):
                A(f"buffer_load_dwordx4 v{VW + m}, s[{WQ}:{WQ + 3}], s{S_T1} offen offset:{m * 1024}{NT_XW} lds")
    A(f"s_add_u32 s{S_KC}, s{S_KC}, 1")
    A(f"s_cmp_eq_u32 s{S_KC}, 9")
    A(f"s_cselect_b32 s{S_KC}, 0, s{S_KC}")
    A("s_branch L1_ld_next")
    A.label("L1_ld_kv")
    A(f"s_cmp_gt_u32 s{S_U}, 16")
    A("s_cbranch_scc1 L1_ld_v")
    for gi in range(4):
        A(f"s_add_u32 m0, s{S_SLOT}, {gi * 4096}")
        A(f"s_add_u32 s{S_T0}, s{S_KOFF}, {gi * 4096}")
        for m in range(4):
            A(f"buffer_load_dwordx4 v{VK + m}, s[{KS}:{KS + 3}], s{S_T0} offen offset:{m * 1024}{NT_KV} lds")
    A(f"s_add_u32 s{S_KOFF}, s{S_KOFF}, 16384")
    A(f"s_and_b32 s{S_KOFF}, s{S_KOFF}, 0x1ffff")
    A(f"s_cmp_eq_u32 s{S_U}, 9")
    A("s_cbranch_scc1 L1_ld_next")
    A.label("L1_ld_v")
    A(f"s_cmp_gt_u32 s{S_U}, 17")
    A("s_cbranch_scc1 L1_ld_wo")
    for gi in range(4):
        A(f"s_add_u32 m0, s{S_SLOT}, {16384 + gi * 4096}")
        A(f"s_add_u32 s{S_T0}, s{S_VOFF}, {gi * 4096}")
        for m in range(4):
            A(f"buffer_load_dwordx4 v{VV}, s[{VS}:{VS + 3}], s{S_T0} offen offset:{m * 1024}{NT_KV} lds")
    A(f"s_add_u32 s{S_VOFF}, s{S_VOFF}, 16384")
    A(f"s_and_b32 s{S_VOFF}, s{S_VOFF}, 0x1ffff")
    A("s_branch L1_ld_next")
    A.label("L1_ld_wo")
    A(f"s_cmp_gt_u32 s{S_U}, 18")
    A("s_cbranch_scc1 L1_ld_next")
    WO_SLOT = (18 % NSLOT) * SLOT
    A(f"s_lshl_b32 s{S_T0}, s{S_G}, 4")
    A(f"s_lshr_b32 s{S_T1}, s{S_J}, 1")
    A(f"s_add_u32 s{S_KC}, s{S_T0}, s{S_T1}")
    A(f"s_mul_i32 s{S_T0}, s{S_KC}, {32 * 1152}")
    A(f"s_and_b32 s{S_ROT}, s{S_J}, 1")
    A(f"s_mul_i32 s{S_T1}, s{S_ROT}, 576")
    A(f"s_add_u32 s{S_T0}, s{S_T0}, s{S_T1}")
    A(f"v_lshlrev_b32 v{T1}, 4, v0")
    for i in range(18):
        A(f"v_add_u32 v{T0}, {64 * i}, v0")
        A(f"v_mul_u32_u24 v{T0}, 1821, v{T0}")
        A(f"v_lshrrev_b32 v{T0}, 16, v{T0}")
        A(f"v_mul_u32_u24 v{T0}, 576, v{T0}")
        A(f"v_add_u32 v{VO + i}, v{T0}, v{T1}")
        if i % 4 == 0:
            A(f"s_mov_b32 m0, {WO_SLOT + (i // 4) * 4096}")
            if i:
                A(f"s_add_u32 s{S_T0}, s{S_T0}, 4096")
        A(f"buffer_load_dwordx4 v{VO + i}, s[{WO}:{WO + 3}], s{S_T0} offen offset:{(i % 4) * 1024}{NT_XW} lds")
    A.label("L1_ld_next")
    A(f"s_add_u32 s{S_SLOT}, s{S_SLOT}, {SLOT}")
    A(f"s_cmp_eq_u32 s{S_SLOT}, {SLOT * NSLOT}")
    A(f"s_cselect_b32 s{S_SLOT}, 0, s{S_SLOT}")
    A(f"s_add_u32 s{S_U}, s{S_U}, 1")
    A(f"s_cmp_lt_u32 s{S_U}, {18 + LOOK}")
    A("s_cbranch_scc1 L1_ld_loop")
    A.vm = []
    A(f"v_lshrrev_b32 v{T0}, 5, v0")
    A(f"v_lshlrev_b32 v{T0}, 4, v{T0}")
    A(f"v_bfe_u32 v{T1}, v0, 4, 1")
    A(f"v_lshl_add_u32 v{T0}, v{T1}, 2, v{T0}")
    A(f"v_bfe_u32 v{T1}, v0, 2, 2")
    A(f"v_add_u32 v{T0}, v{T0}, v{T1}")
    A(f"v_mul_u32_u24 v{T0}, 576, v{T0}")
    A(f"v_and_b32 v{T1}, 3, v0")
    A(f"v_lshl_add_u32 v{T0}, v{T1}, 3, v{T0}")
    A(f"v_add_u32 v{T0}, {WO_SLOT}, v{T0}")
    A(f"v_lshlrev_b32 v{T1}, 4, v0")
    A(f"s_mul_i32 s{S_T0}, s{S_ROT}, {18 * 131072}")
    A(f"s_lshl_b32 s{S_T1}, s{S_KC}, 10")
    A(f"s_add_u32 s{S_T0}, s{S_T0}, s{S_T1}")
    A(f"s_add_u32 s{S_T0}, s{S_T0}, {WS_WO}")
    A.wait(vm=0)
    ST.stamp()
    RB = 64
    for cb in range(18):
        A(f"ds_read_b64_tr_b16 {vr(RB + 4 * cb, 2)}, v{T0} offset:{cb * 32}")
        A(f"ds_read_b64_tr_b16 {vr(RB + 4 * cb + 2, 2)}, v{T0} offset:{cb * 32 + 8 * 576}")
    for cb in range(18):
        A(f"buffer_store_dwordx4 {vr(RB + 4 * cb, 4)}, v{T1}, s[{WS}:{WS + 3}], s{S_T0} offen")
        A(f"s_add_u32 s{S_T0}, s{S_T0}, 131072")
    ST.stamp()
    ST.flush(WS, S_WAVE, 0, 0)
    A("s_endpgm")

    A.hist, A.vm, A.lgkm, A.smem_out = [], [], [{("s", i) for i in range(4, 20)}], True
    A.label("L1_compute")
    AD, AV = 2, 10
    BX, BW, BK, BV = 14, 15, 16, 17
    M, MC, AL, THR, T0, T1, T2, T3 = 18, 19, 20, 21, 22, 23, 24, 25
    ONES = 28
    QF, S, P, O, L, QA = 32, 64, 96, 112, 176, 192
    AK, AVF = 0, 64
    S_PEND = 68
    A(f"s_sub_u32 s{S_WAVE}, s{S_WAVE}, 1")
    A(f"v_and_b32 v{T0}, 31, v0")
    A(f"v_lshrrev_b32 v{T1}, 5, v0")
    A(f"v_bfe_u32 v{T2}, v0, 1, 3")
    A(f"v_xor_b32 v{T2}, v{T2}, v{T1}")
    A(f"v_lshlrev_b32 v{T2}, 4, v{T2}")
    A(f"v_lshl_add_u32 v{BX}, v{T0}, 7, v{T2}")
    A(f"s_lshl_b32 s{S_T0}, s{S_WAVE}, 12")
    A(f"v_add_u32 v{BX}, s{S_T0}, v{BX}")
    A(f"v_and_b32 v{T2}, 15, v0")
    A(f"v_xor_b32 v{T2}, v{T2}, v{T1}")
    A(f"v_lshlrev_b32 v{T2}, 4, v{T2}")
    A(f"v_lshl_add_u32 v{BK}, v{T0}, 8, v{T2}")
    A(f"v_bfe_u32 v{T0}, v0, 2, 2")
    A(f"v_mul_u32_u24 v{T0}, 320, v{T0}")
    A(f"v_bfe_u32 v{T2}, v0, 4, 1")
    A(f"v_lshl_add_u32 v{T0}, v{T2}, 5, v{T0}")
    A(f"v_and_b32 v{T2}, 3, v0")
    A(f"v_lshl_add_u32 v{BV}, v{T2}, 3, v{T0}")
    A(f"v_lshl_add_u32 v{BV}, v{T1}, 10, v{BV}")
    A(f"v_and_b32 v{T2}, 1, v0")
    A(f"v_lshl_add_u32 v{BW}, v{T2}, 4, v{T0}")
    A(f"v_bfe_u32 v{T2}, v0, 1, 1")
    A(f"v_lshl_add_u32 v{BW}, v{T2}, 3, v{BW}")
    A(f"v_lshl_add_u32 v{BW}, v{T1}, 11, v{BW}")
    MF = "v_mfma_f32_32x32x16_bf16"
    for i in range(32, 64):
        A(f"v_accvgpr_write_b32 a{AK + i}, 0")
    for i in range(8, 16):
        A(f"v_accvgpr_write_b32 a{AVF + i}, 0")
    for base in [O, O + 16, O + 32, O + 48, L, QA, QA + 16, QA + 32, QA + 48]:
        A(f"{MF} {vr(base, 16)}, {ar(AK + 32, 4)}, {ar(AK + 32, 4)}, 0")
    for i in range(4):
        A(f"v_mov_b32 v{ONES + i}, 0x3f803f80")
    A(f"s_mov_b32 s{S_SLOT}, 0")
    A(f"s_mov_b32 s{S_CNT}, 0")
    A(f"s_mov_b32 s{S_C}, {f32hex(SC)}")
    A(f"s_mov_b64 s[{S_PEND}:{S_PEND + 1}], 0")
    A.wait(lgkm=0)
    srd(A, WS, 18, 19, WS_SIZE)
    ST.stamp()

    def next_slot():
        return [f"s_add_u32 s{S_SLOT}, s{S_SLOT}, {SLOT}",
                f"s_cmp_eq_u32 s{S_SLOT}, {SLOT * NSLOT}",
                f"s_cselect_b32 s{S_SLOT}, 0, s{S_SLOT}"]

    def addr_ops(base, dst, n, step):
        ops = [f"v_add_u32 v{dst}, s{S_SLOT}, v{base}"]
        for i in range(1, n):
            ops.append(f"v_xor_b32 v{dst + i}, {i * step}, v{dst}")
        return ops

    EXP = os.environ.get("EXP", "")

    def run(mf, fill):
        if EXP:
            for k in fill:
                f = fill[k]
                if "noexp" in EXP:
                    f = [t.replace("v_exp_f32", "v_mov_b32") for t in f]
                if "noread" in EXP:
                    f = [t for t in f if not t.startswith("ds_read")]
                if "nofma" in EXP:
                    f = [t for t in f if not t.startswith("v_fma")]
                if "nocvt" in EXP:
                    f = [t for t in f if not t.startswith("v_cvt")]
                if "nomax" in EXP:
                    f = [t for t in f if not t.startswith("v_max")]
                if "delexp" in EXP:
                    f = [t for t in f if not t.startswith("v_exp")]
                if "fma2mul" in EXP:
                    f = [(t.replace("v_fma_f32", "v_mul_f32").split(", s")[0] + ", v19") if t.startswith("v_fma") else t for t in f]
                fill[k] = f
        over = {k: v for k, v in fill.items() if k >= len(mf)}
        for k in over:
            del fill[k]
        interleave(A, mf, fill)
        for k in sorted(over):
            for t in over[k]:
                A(t)

    def xw_reads(ks):
        r = [f"ds_read_b128 {ar(AVF + 4 * ks, 4)}, v{AD + ks}"]
        for dt in range(4):
            f = AK + 4 * (4 * ks + dt)
            r.append(f"ds_read_b64_tr_b16 {ar(f, 2)}, v{AV + dt} offset:{12288 + ks * 4096}")
            r.append(f"ds_read_b64_tr_b16 {ar(f + 2, 2)}, v{AV + dt} offset:{12288 + ks * 4096 + 1024}")
        return r

    def xw_mf(ks):
        return [f"{MF} {vr(QA + 16 * dt, 16)}, {ar(AK + 4 * (4 * ks + dt), 4)}, {ar(AVF + 4 * ks, 4)}, {vr(QA + 16 * dt, 16)}"
                for dt in range(4)]
    for t in addr_ops(BX, AD, 4, 32) + addr_ops(BW, AV, 4, 64):
        A(t)
    A.raw(".p2align 3")
    A.label("L1_xw")
    A("s_barrier")
    ST.stamp(1)
    r01 = xw_reads(0) + xw_reads(1)
    fill = {-1: r01[:3]}
    spread(fill, r01[3:], 0, 3)
    spread(fill, xw_reads(2), 5, 3)
    fill.setdefault(7, []).append("WAIT9")
    last = spread(fill, xw_reads(3), 8, 3)
    tail = next_slot() + addr_ops(BX, AD, 4, 32) + addr_ops(BW, AV, 4, 64) + [f"s_add_u32 s{S_CNT}, s{S_CNT}, 1", f"s_cmp_lt_u32 s{S_CNT}, 9"]
    spread(fill, tail, last + 1, 4)
    run(xw_mf(2) + xw_mf(3) + xw_mf(0) + xw_mf(1), fill)
    A.wait(lgkm=0)
    A("s_cbranch_scc1 L1_xw")
    A.check_loop("L1_xw")

    def k_reads(kt):
        return [f"ds_read_b128 {ar(AK + 4 * ks, 4)}, v{AD + ks} offset:{kt * 8192}" for ks in range(8)]

    def v_reads(kt, base=AVF, dt_outer=False):
        r = []
        it = [(tp, dt) for tp in range(2) for dt in range(4)]
        if dt_outer:
            it = [(tp, dt) for dt in range(4) for tp in range(2)]
        for tp, dt in it:
            f = base + 4 * (4 * tp + dt)
            o = 16384 + (2 * kt + tp) * 4096
            r.append(f"ds_read_b64_tr_b16 {ar(f, 2)}, v{AV + dt} offset:{o}")
            r.append(f"ds_read_b64_tr_b16 {ar(f + 2, 2)}, v{AV + dt} offset:{o + 2048}")
        return r

    def qk_mf(par):
        return [f"{MF} {vr(S + 16 * par, 16)}, {ar(AK + 4 * ks, 4)}, {vr(QF + 4 * ks, 4)}, "
                + ("0" if ks == 0 else vr(S + 16 * par, 16)) for ks in range(8)]

    def pv(par, tp, dt, base=AVF):
        return f"{MF} {vr(O + 16 * dt, 16)}, {ar(base + 4 * (4 * tp + dt), 4)}, {vr(P + 8 * par + 4 * tp, 4)}, {vr(O + 16 * dt, 16)}"

    def lm(par, tp):
        return f"{MF} {vr(L, 16)}, {vr(ONES, 4)}, {vr(P + 8 * par + 4 * tp, 4)}, {vr(L, 16)}"

    def pv_mf(par):
        return [lm(par, 0)] + [pv(par, 0, dt) for dt in range(4)] + [lm(par, 1)] + [pv(par, 1, dt) for dt in range(4)]

    def max_ops(par):
        b = S + 16 * par
        ops = [f"v_max3_f32 v{T0}, v{b}, v{b + 1}, v{b + 2}", f"v_max3_f32 v{T1}, v{b + 3}, v{b + 4}, v{b + 5}"]
        for n, i in enumerate(range(6, 16, 2)):
            t = T0 if n % 2 == 0 else T1
            ops.append(f"v_max3_f32 v{t}, v{b + i}, v{b + i + 1}, v{t}")
        ops.append(f"v_max_f32 v{T0}, v{T0}, v{T1}")
        return ops

    def sm_ops(par):
        b = S + 16 * par
        f = [f"v_fma_f32 v{b + i}, v{b + i}, s{S_C}, -v{MC}" for i in range(16)]
        e = [f"v_exp_f32 v{b + i}, v{b + i}" for i in range(16)]
        cv = [f"v_cvt_pk_bf16_f32 v{P + 8 * par + i}, v{b + 2 * i}, v{b + 2 * i + 1}" for i in range(8)]
        seq = [f[0], f[1]]
        for i in range(16):
            seq.append(e[i])
            if i + 2 < 16:
                seq.append(f[i + 2])
            if i >= 3 and i % 2 == 1:
                seq.append(cv[(i - 3) // 2])
        seq.append(cv[7])
        return seq

    slow_sites = []

    def checkpoint(name, need_max=True, cmp_done=False):
        if need_max:
            if not cmp_done:
                A(f"v_cmp_gt_f32 vcc, v{T0}, v{THR}")
            A(f"s_or_b64 vcc, vcc, s[{S_PEND}:{S_PEND + 1}]")
            A(f"s_cbranch_vccnz L1_slow_{name}")
        else:
            A(f"s_cmp_lg_u32 s{S_PEND}, 0")
            A(f"s_cbranch_scc1 L1_slow_{name}")
        A.label(f"L1_back_{name}")
        slow_sites.append((name, need_max))

    def set_max(first):
        ops = [f"v_mov_b32 v{T1}, v{T0}",
               f"v_permlane32_swap_b32 v{T0}, v{T1}"]
        if first:
            ops += [f"v_max_f32 v{M}, v{T0}, v{T1}", f"v_mul_f32 v{MC}, s{S_C}, v{M}"]
        else:
            ops += [f"v_max3_f32 v{M}, v{T0}, v{T1}, v{M}",
                    f"v_mov_b32 v{T2}, v{MC}",
                    f"v_mul_f32 v{MC}, s{S_C}, v{M}",
                    f"v_sub_f32 v{T2}, v{T2}, v{MC}",
                    f"v_exp_f32 v{AL}, v{T2}"]
        ops.append(f"v_add_f32 v{THR}, {f32hex(8.0 / SC)}, v{M}")
        return ops

    for t in addr_ops(BK, AD, 8, 32):
        A(t)
    A("s_barrier")
    ST.stamp()
    cv = [f"v_cvt_pk_bf16_f32 v{QF + i}, v{QA + 2 * i}, v{QA + 2 * i + 1}" for i in range(32)]
    mf = [xw_mf(2)[dt] if k == 2 else xw_mf(3)[dt] for dt in range(4) for k in (2, 3)]
    fill = {-1: k_reads(0)}
    spread(fill, cv[:8], 5, 4)
    run(mf, fill)
    for t in cv[8:16]:
        A(t)
    fill = {}
    spread(fill, cv[16:], 0, 5)
    mfq = qk_mf(0)
    kr = k_reads(1)
    for i in range(8):
        fill.setdefault(i, []).append(kr[i])
    run(mfq, fill)
    fill = {}
    spread(fill, next_slot() + addr_ops(BK, AD, 8, 32) + addr_ops(BV, AV, 4, 64), 0, 6)
    spread(fill, max_ops(0) + set_max(True), 3, 6)
    sm0 = sm_ops(0)
    spread(fill, sm0, 6, 6)
    run(qk_mf(1), fill)
    for t in max_ops(1):
        A(t)
    A(f"v_cmp_gt_f32 vcc, v{T0}, v{THR}")
    A(f"s_mov_b32 s{S_CNT}, 0")
    A("s_barrier")
    ST.stamp()
    for t in k_reads(0) + v_reads(0)[:8]:
        A(t)
    A("s_branch L1_kv_entry")
    A.raw(".p2align 3")
    A.label("L1_kv")
    A.lgkm = []
    A("s_barrier")
    ST.stamp()
    sm_e, sm_o = sm_ops(0), sm_ops(1)
    SPLIT = int(os.environ.get("SPLIT", "17"))
    SPLITO = int(os.environ.get("SPLITO", "23"))
    BUD = float(os.environ.get("BUD", "6"))
    cmpop = [f"v_cmp_gt_f32 vcc, v{T0}, v{THR}"]
    vr0, vr1 = v_reads(0), v_reads(1)
    fill = sched(10, [(k_reads(0), -1, 3), (sm_e[SPLIT:], 0, 9), (max_ops(1) + cmpop, 2, 8), (vr0[:8], 5, 9)],
                 BUD, {"head": 2, 9: 3})
    run(pv_mf(1), fill)
    A.label("L1_kv_entry")
    checkpoint("a", cmp_done=True)
    A.wait(lgkm=8)
    fill = sched(8, [(vr0[8:], 0, 4), (sm_o[:SPLITO], 0, 7), (k_reads(1)[:4], 4, 7)], BUD)
    run(qk_mf(0), fill)
    fill = sched(10, [(["WAIT4"] + k_reads(1)[4:], 0, 2), (sm_o[SPLITO:], 0, 9), (max_ops(0) + cmpop, 2, 8), (vr1[:8], 5, 9),
                      (next_slot() + addr_ops(BK, AD, 8, 32)[:6], 3, 9)], BUD, {9: 3})
    run(pv_mf(0), fill)
    checkpoint("b", cmp_done=True)
    A.wait(lgkm=8)
    fill = sched(8, [(vr1[8:] + addr_ops(BV, AV, 4, 64), 0, 6), (sm_e[:SPLIT], 0, 7),
                     (addr_ops(BK, AD, 8, 32)[6:] + [f"s_add_u32 s{S_CNT}, s{S_CNT}, 1", f"s_cmp_lt_u32 s{S_CNT}, 7"], 0, 7)],
                 BUD, {7: 3})
    run(qk_mf(1), fill)
    A.wait(lgkm=0)
    A("s_cbranch_scc1 L1_kv")
    A.check_loop("L1_kv")
    fill = {}
    last = spread(fill, sm_e[SPLIT:], 0, 5)
    spread(fill, max_ops(1), last + 1, 5)
    run(pv_mf(1), fill)
    checkpoint("c")
    for t in sm_o:
        A(t)
    A(f"v_bfe_u32 v{T3}, v0, 4, 1")
    A(f"v_lshlrev_b32 v{T3}, 17, v{T3}")
    A(f"v_lshrrev_b32 v{T1}, 5, v0")
    A(f"v_lshl_add_u32 v{T3}, v{T1}, 8, v{T3}")
    A(f"v_and_b32 v{T1}, 15, v0")
    A(f"v_lshl_add_u32 v{T3}, v{T1}, 4, v{T3}")
    A(f"s_mul_i32 s{S_T0}, s{S_B}, 6")
    A(f"s_lshl_b32 s{S_T1}, s{S_WAVE}, 1")
    A(f"s_add_u32 s{S_T0}, s{S_T0}, s{S_T1}")
    A(f"s_lshl_b32 s{S_T0}, s{S_T0}, 17")
    A(f"s_lshl_b32 s{S_T1}, s{S_HQ}, 12")
    A(f"s_add_u32 s{S_T0}, s{S_T0}, s{S_T1}")
    if WS_O:
        A(f"s_add_u32 s{S_T0}, s{S_T0}, {WS_O}")
    A(lm(0, 0))
    A(lm(0, 1))
    A("s_barrier")
    ST.stamp()
    ra, rb = v_reads(0), v_reads(1, AK, True)
    fill = {-1: ra[:12]}
    spread(fill, ra[12:] + rb, 0, 3)
    run([pv(0, tp, dt) for tp in range(2) for dt in range(4)], fill)
    checkpoint("d", False)

    def fin(dt):
        ops = []
        for t in range(2):
            b = O + 16 * dt + 8 * t
            for i in range(8):
                ops.append(f"v_mul_f32 v{b + i}, v{AL}, v{b + i}")
            d = S + 8 * dt + 4 * t
            for i in range(4):
                ops.append(f"v_cvt_pk_bf16_f32 v{d + i}, v{b + 2 * i}, v{b + 2 * i + 1}")
            ops.append(f"buffer_store_dwordx4 {vr(d, 4)}, v{T3}, s[{WS}:{WS + 3}], s{S_T0} offen offset:{dt * 1024 + t * 512}{O_POL}")
        return ops
    mf = [lm(1, 0), lm(1, 1)] + [pv(1, tp, dt, AK) for dt in range(4) for tp in range(2)]
    fill = {8: [f"v_rcp_f32 v{AL}, v{L}"]}
    run(mf, fill)
    for dt in range(4):
        for t in fin(dt):
            A(t)
    ST.stamp()
    A(f"s_add_u32 s{S_WAVE}, s{S_WAVE}, 1")
    ST.flush(WS, S_WAVE, 0, 0)
    if STAMPS == 3:
        A("s_cmp_lg_u32 s2, 0")
        A("s_cbranch_scc1 L1_end")
        A(f"s_cmp_lg_u32 s{S_WAVE}, 1")
        A("s_cbranch_scc1 L1_end")
        srd(A, X, 16, 17, 256)
        A(f"buffer_store_dword v26, v27, s[{X}:{X + 3}], 0 offen")
    A.label("L1_end")
    A("s_endpgm")
    for name, need_max in slow_sites:
        A.hist = []
        A.label(f"L1_slow_{name}")
        A("s_nop 15")
        A(f"s_cmp_eq_u32 s{S_PEND}, 0")
        A(f"s_cbranch_scc1 L1_slow2_{name}")
        A(f"v_mul_f32 v{L}, v{AL}, v{L}")
        for i in range(64):
            A(f"v_mul_f32 v{O + i}, v{AL}, v{O + i}")
        A(f"s_mov_b64 s[{S_PEND}:{S_PEND + 1}], 0")
        A.label(f"L1_slow2_{name}")
        if need_max:
            A(f"v_cmp_gt_f32 vcc, v{T0}, v{THR}")
            A("s_nop 4")
            A(f"s_cbranch_vccz L1_slow3_{name}")
            for t in set_max(False):
                A(t)
            A(f"s_mov_b64 s[{S_PEND}:{S_PEND + 1}], -1")
            A.label(f"L1_slow3_{name}")
        A("s_nop 3")
        A(f"s_branch L1_back_{name}")
    desc = dict(name=K, vgpr=256 + 96, accum=256, sgpr=80)
    return A, desc


def gen_k2():
    A = Asm()
    K = "k2_kernel"
    U = K2U
    A.raw(f".globl {K}\n.p2align 8\n.type {K},@function\n{K}:")
    S_G, S_J, S_RG, S_CG, S_WAVE, S_T0, S_T1, S_KO, S_CNT, S_BASE = 20, 21, 22, 23, 24, 25, 26, 27, 36, 37
    WS, OS = 28, 32
    S_IDX, S_TM = 38, 40
    VA = 2
    T0, T1 = 8, 9
    ACC = 12
    FR = 48
    ST = Stamper(A, 250, S_IDX, S_TM)
    ST.entry()
    A("s_cmp_ge_u32 s2, 192")
    A("s_cbranch_scc1 L2_end")
    A("s_load_dwordx4 s[4:7], s[0:1], 48")
    A("s_load_dwordx2 s[8:9], s[0:1], 40")
    A("v_lshrrev_b32 v1, 6, v0")
    A(f"s_and_b32 s{S_G}, s2, 7")
    A(f"v_readfirstlane_b32 s{S_WAVE}, v1")
    A("v_and_b32 v0, 63, v0")
    ST.init()
    A(f"s_lshr_b32 s{S_J}, s2, 3")
    A(f"s_lshr_b32 s{S_T0}, s{S_G}, 1")
    A(f"s_lshl_b32 s{S_T0}, s{S_T0}, 2")
    A(f"s_and_b32 s{S_T1}, s{S_J}, 3")
    A(f"s_add_u32 s{S_RG}, s{S_T0}, s{S_T1}")
    A(f"s_lshl_b32 s{S_KO}, s{S_T1}, 1")
    A(f"s_and_b32 s{S_T0}, s{S_G}, 1")
    A(f"s_mul_i32 s{S_T0}, s{S_T0}, 6")
    A(f"s_lshr_b32 s{S_T1}, s{S_J}, 2")
    A(f"s_add_u32 s{S_CG}, s{S_T0}, s{S_T1}")
    A(f"s_add_u32 s{S_KO}, s{S_KO}, s{S_T1}")
    A(f"s_and_b32 s{S_KO}, s{S_KO}, 7")
    A(f"s_lshl_b32 s{S_KO}, s{S_KO}, 12")
    A(f"s_lshl_b32 s{S_BASE}, s{S_WAVE}, 15")
    A(f"v_lshlrev_b32 v{T0}, 4, v0")
    A(f"s_mul_i32 s{S_T0}, s{S_CG}, {3 * 131072}")
    A(f"s_add_u32 s{S_T0}, s{S_T0}, {WS_WO}")
    A(f"s_add_u32 s{S_T0}, s{S_T0}, s{S_BASE}")
    A(f"v_add_u32 v{VA}, s{S_T0}, v{T0}")
    A(f"v_add_u32 v{VA + 1}, 131072, v{VA}")
    A(f"v_add_u32 v{VA + 2}, 262144, v{VA}")
    A(f"s_mul_i32 s{S_T0}, s{S_RG}, {3 * 131072}")
    if WS_O:
        A(f"s_add_u32 s{S_T0}, s{S_T0}, {WS_O}")
    A(f"s_add_u32 s{S_T0}, s{S_T0}, s{S_BASE}")
    A(f"v_add_u32 v{VA + 3}, s{S_T0}, v{T0}")
    A(f"v_add_u32 v{VA + 4}, 131072, v{VA + 3}")
    A(f"v_add_u32 v{VA + 5}, 262144, v{VA + 3}")
    for i in range(36):
        A(f"v_mov_b32 v{ACC + i}, 0")
    A(f"s_mov_b32 s{S_CNT}, 0")
    A.wait(lgkm=0)
    srd(A, WS, 6, 7, WS_SIZE)
    srd(A, OS, 8, 9, 884736)
    ST.stamp()

    def loads(m):
        return [f"buffer_load_dwordx4 {vr(FR + 24 * m + 4 * i, 4)}, v{VA + i}, s[{WS}:{WS + 3}], s{S_KO} offen offset:{m * 1024}"
                for i in (0, 3, 4, 5, 1, 2)]

    def mfs(m):
        return [f"v_mfma_f32_16x16x32_bf16 {vr(ACC + 4 * (3 * a + b), 4)}, {vr(FR + 24 * m + 4 * a, 4)}, "
                f"{vr(FR + 24 * m + 12 + 4 * b, 4)}, {vr(ACC + 4 * (3 * a + b), 4)}" for a in range(3) for b in range(3)]

    def adv():
        A(f"s_add_u32 s{S_KO}, s{S_KO}, {1024 * U}")
        A(f"s_and_b32 s{S_KO}, s{S_KO}, 0x7fff")
    for m in range(U):
        for t in loads(m):
            A(t)
    adv()
    state0 = [set(x) for x in A.vm]
    A.label("L2_loop")
    for m in range(U):
        for t in mfs(m):
            A(t)
        for t in loads(m):
            A(t)
    adv()
    A(f"s_add_u32 s{S_CNT}, s{S_CNT}, 1")
    A(f"s_cmp_lt_u32 s{S_CNT}, {32 // U - 1}")
    A("s_cbranch_scc1 L2_loop")
    A.check_loop("L2_loop")
    assert [set(x) for x in A.vm] == state0, (A.vm, state0)
    for m in range(U):
        for t in mfs(m):
            A(t)
    ST.stamp()
    A(f"s_mul_i32 s{S_T0}, s{S_WAVE}, 9216")
    A(f"v_add_u32 v{T1}, s{S_T0}, v{T0}")
    for i in range(9):
        A(f"ds_write_b128 v{T1}, {vr(ACC + 4 * i, 4)} offset:{i * 1024}")
    A(f"v_and_b32 v{VA}, 15, v0")
    A(f"v_mul_u32_u24 v{VA}, 1152, v{VA}")
    A(f"v_lshrrev_b32 v{VA + 1}, 4, v0")
    A(f"v_lshl_add_u32 v{VA}, v{VA + 1}, 3, v{VA}")
    A(f"s_mul_i32 s{S_T0}, s{S_RG}, {48 * 1152}")
    A(f"s_mul_i32 s{S_T1}, s{S_CG}, 96")
    A(f"s_add_u32 s{S_BASE}, s{S_T0}, s{S_T1}")
    A(f"s_lshl_b32 s{S_T0}, s{S_WAVE}, 10")
    A(f"v_add_u32 v{T1}, s{S_T0}, v{T0}")
    A.wait(lgkm=0)
    A("s_barrier")
    for rep in range(3):
        if rep == 2:
            A(f"s_cmp_lg_u32 s{S_WAVE}, 0")
            A("s_cbranch_scc1 L2_done")
        for w in range(4):
            A(f"ds_read_b128 {vr(FR + 16 * rep + 4 * w, 4)}, v{T1} offset:{w * 9216 + rep * 4096}")
        A(f"s_add_u32 s{S_T0}, s{S_WAVE}, {4 * rep}")
        A(f"s_mul_i32 s{S_T1}, s{S_T0}, 11")
        A(f"s_lshr_b32 s{S_T1}, s{S_T1}, 5")
        A(f"s_mul_i32 s{S_KO}, s{S_T1}, 3")
        A(f"s_sub_u32 s{S_T0}, s{S_T0}, s{S_KO}")
        A(f"s_mul_i32 s{S_T0}, s{S_T0}, {16 * 1152}")
        A(f"s_lshl_b32 s{S_T1}, s{S_T1}, 5")
        A(f"s_add_u32 s{S_T0}, s{S_T0}, s{S_T1}")
        A(f"s_add_u32 s{S_T0}, s{S_T0}, s{S_BASE}")
        b = FR + 16 * rep
        for r in range(4):
            A(f"v_add_f32 v{b + r}, v{b + r}, v{b + 4 + r}")
            A(f"v_add_f32 v{b + 8 + r}, v{b + 8 + r}, v{b + 12 + r}")
        for r in range(4):
            A(f"v_add_f32 v{b + r}, v{b + r}, v{b + 8 + r}")
        A(f"v_cvt_pk_bf16_f32 v{b}, v{b}, v{b + 1}")
        A(f"v_cvt_pk_bf16_f32 v{b + 1}, v{b + 2}, v{b + 3}")
        A(f"buffer_store_dwordx2 {vr(b, 2)}, v{VA}, s[{OS}:{OS + 3}], s{S_T0} offen")
    A.label("L2_done")
    ST.stamp()
    ST.flush(WS, S_WAVE, 0, 1)
    if STAMPS == 3:
        A("s_cmp_lg_u32 s2, 0")
        A("s_cbranch_scc1 L2_end")
        A(f"s_cmp_lg_u32 s{S_WAVE}, 0")
        A("s_cbranch_scc1 L2_end")
        A(f"s_mov_b32 s{S_T0}, {WS_STAMP + 256}")
        A(f"buffer_load_dword v252, v251, s[{WS}:{WS + 3}], s{S_T0} offen")
        srd(A, OS, 4, 5, 256)
        for i in range(4):
            A(f"v_readlane_b32 s{S_T0}, v250, {i}")
            A("s_nop 4")
            A(f"v_writelane_b32 v252, s{S_T0}, {12 + i}")
        A(f"buffer_store_dword v252, v251, s[{OS}:{OS + 3}], 0 offen")
        if os.environ.get("DIAG"):
            A(f"v_readlane_b32 s{S_T0}, v252, {os.environ['DIAG']}")
            A(f"s_mov_b32 s{S_CNT}, 0")
            A.label("L2_diag")
            A(f"s_memrealtime s[{S_TM}:{S_TM + 1}]")
            A.wait(lgkm=0)
            A(f"s_sub_u32 s{S_T1}, s{S_TM}, s{S_T0}")
            A(f"s_add_u32 s{S_CNT}, s{S_CNT}, 1")
            A(f"s_cmp_gt_u32 s{S_CNT}, 100000")
            A("s_cbranch_scc1 L2_end")
            A(f"s_cmp_lt_u32 s{S_T1}, 10000")
            A("s_cbranch_scc1 L2_diag")
    A.label("L2_end")
    A("s_endpgm")
    nv = max(FR + 24 * U, FR + 48)
    nv = 256 if STAMPS else (nv + 3) // 4 * 4
    desc = dict(name=K, vgpr=nv, accum=nv, sgpr=48)
    return A, desc


def descriptor(d):
    return f""".amdhsa_kernel {d['name']}
  .amdhsa_next_free_vgpr {d['vgpr']}
  .amdhsa_next_free_sgpr {d['sgpr']}
  .amdhsa_accum_offset {d['accum']}
  .amdhsa_group_segment_fixed_size 0
  .amdhsa_kernarg_size 64
  .amdhsa_user_sgpr_count 2
  .amdhsa_user_sgpr_kernarg_segment_ptr 1
  .amdhsa_system_sgpr_workgroup_id_x 1
.end_amdhsa_kernel
"""


def main():
    a1, d1 = gen_k1()
    a2, d2 = gen_k2()
    txt = HEADER
    txt += "; @launch kernel=k1_kernel grid=(256,1,1) block=(256,1,1) lds=163840\n"
    txt += "; @launch kernel=k2_kernel grid=(192,1,1) block=(256,1,1) lds=36864\n"
    for _ in range(int(os.environ.get("EXTRA", "0"))):
        txt += "; @launch kernel=k3_kernel grid=(256,1,1) block=(256,1,1) lds=0\n"
    txt += '.amdgcn_target "amdgcn-amd-amdhsa--gfx950"\n.text\n'
    txt += a1.text() + a2.text()
    if os.environ.get("EXTRA"):
        txt += ".globl k3_kernel\n.p2align 8\n.type k3_kernel,@function\nk3_kernel:\n    s_endpgm\n"
    txt += '.section .rodata,"a"\n.p2align 6\n' + descriptor(d1) + ".p2align 6\n" + descriptor(d2)
    if os.environ.get("EXTRA"):
        txt += ".p2align 6\n" + descriptor(dict(name="k3_kernel", vgpr=8, accum=8, sgpr=16))
    open(OUT, "w").write(txt)
    print("wrote", OUT, "nops k1", a1.nops, "k2", a2.nops)


if __name__ == "__main__":
    main()
```

```python
import math, struct, sys, os
from asmlib import Asm

NAME = "standalone__gqa_block_cached__near_ridge"
STAMPS = int(os.environ.get("STAMPS", "0"))
LOOK = int(os.environ.get("LOOK", "2"))
NT_KV = os.environ.get("NT_KV", " nt")
NT_XW = os.environ.get("NT_XW", " nt")
O_POL = os.environ.get("O_POL", "")
K2U = int(os.environ.get("K2U", "2"))
OUT = os.environ.get("OUT", f"cdna_kernels/{NAME}.s")

WS_O = 0
WS_WO = 8 << 20
WS_STAMP = 16 << 20
WS_SIZE = 32 << 20
SLOT = 32768
NSLOT = 5


def f32hex(x):
    return "0x%08x" % struct.unpack("<I", struct.pack("<f", x))[0]


SC = math.log2(math.e) / math.sqrt(128.0)

HEADER = """; Kernarg layout for this problem (64 bytes, ptrs only, base s[0:1]):
"""


def vr(a, n=1):
    return f"v{a}" if n == 1 else f"v[{a}:{a + n - 1}]"


def ar(a, n=1):
    return f"a{a}" if n == 1 else f"a[{a}:{a + n - 1}]"


def sr(a, n=1):
    return f"s{a}" if n == 1 else f"s[{a}:{a + n - 1}]"


def srd(A, d, lo, hi, size):
    if lo != d:
        A(f"s_mov_b32 s{d}, s{lo}")
        A(f"s_mov_b32 s{d + 1}, s{hi}")
    if isinstance(size, int):
        A(f"s_mov_b32 s{d + 2}, {size}")
    else:
        A(f"s_mov_b32 s{d + 2}, {size}")
    A(f"s_mov_b32 s{d + 3}, 0x00020000")


class Stamper:
    def __init__(self, A, vt, sidx, stmp):
        self.A, self.vt, self.sidx, self.stmp = A, vt, sidx, stmp

    def entry(self):
        if STAMPS:
            self.A(f"{'s_memrealtime' if STAMPS >= 2 else 's_memtime'} s[{self.stmp + 2}:{self.stmp + 3}]")

    def init(self):
        if STAMPS:
            self.A(f"v_mov_b32 v{self.vt}, 0")
            self.A(f"s_mov_b32 s{self.sidx}, 1")
            self.A.wait(lgkm=0)
            self.A(f"v_writelane_b32 v{self.vt}, s{self.stmp + 2}, 0")

    def stamp(self, lvl=0):
        if STAMPS and not (STAMPS == 3 and lvl):
            A = self.A
            A(f"{'s_memrealtime' if STAMPS >= 2 else 's_memtime'} s[{self.stmp}:{self.stmp + 1}]")
            A.wait(lgkm=0)
            A(f"s_mov_b32 m0, s{self.sidx}")
            A("s_nop 0")
            A(f"v_writelane_b32 v{self.vt}, s{self.stmp}, m0")
            A(f"s_add_u32 s{self.sidx}, s{self.sidx}, 1")

    def flush(self, wssrd, s_wave, vlane, kern):
        if STAMPS:
            A = self.A
            A(f"s_lshl_b32 s{self.stmp}, s2, 3")
            A(f"s_add_u32 s{self.stmp}, s{self.stmp}, s{s_wave}")
            A(f"s_lshl_b32 s{self.stmp}, s{self.stmp}, 8")
            A(f"s_add_u32 s{self.stmp}, s{self.stmp}, {WS_STAMP + kern * (1 << 20)}")
            A(f"v_lshlrev_b32 v{self.vt + 1}, 2, v{vlane}")
            A(f"buffer_store_dword v{self.vt}, v{self.vt + 1}, s[{wssrd}:{wssrd + 3}], s{self.stmp} offen")


def interleave(A, mf, fill):
    for t in fill.get(-1, []):
        A(t)
    for i, m in enumerate(mf):
        A(m)
        for t in fill.get(i, []):
            if t.startswith("WAIT"):
                A.wait(lgkm=int(t[4:]))
            else:
                A(t)


def spread(fill, ops, start, per, cost=None):
    s, acc = start, 0.0
    for o in ops:
        c = 2.0 if o.startswith("v_exp") else 1.0
        if acc + c > per + 1e-9 and acc > 0:
            s += 1
            acc = 0.0
        fill.setdefault(s, []).append(o)
        acc += c
    return s


def cost_of(o):
    return 2.0 if o.startswith("v_exp") else 1.0


def sched(nslots, streams, budget=6.0, pre=None):
    fill = {}
    used = dict(pre or {})
    pos = [0] * len(streams)
    for s_ in range(-1, nslots):
        b = budget - used.get(s_, 0.0)
        if s_ == -1:
            b = used.get("head", 0.0)
        lastk = None
        while True:
            best, bu = None, -1
            for k, (ops, f, l) in enumerate(streams):
                if pos[k] >= len(ops) or s_ < f:
                    continue
                rem = sum(cost_of(o) for o in ops[pos[k]:])
                u = rem / max(l - s_ + 1, 1e-3)
                if k == lastk:
                    u *= 0.7
                if u > bu:
                    best, bu = k, u
            if best is None:
                break
            ops, f, l = streams[best]
            c = cost_of(ops[pos[best]])
            if c > b + 0.01 and s_ < l:
                dl = [k for k, (o2, f2, l2) in enumerate(streams) if pos[k] < len(o2) and l2 <= s_ and f2 <= s_]
                if not dl:
                    alt = [k for k, (o2, f2, l2) in enumerate(streams)
                           if pos[k] < len(o2) and f2 <= s_ and cost_of(o2[pos[k]]) <= b + 0.01]
                    if not alt:
                        break
                    best = alt[0]
                else:
                    best = dl[0]
                ops, f, l = streams[best]
                c = cost_of(ops[pos[best]])
            fill.setdefault(s_, []).append(ops[pos[best]])
            pos[best] += 1
            b -= c
            lastk = best
    for k, (ops, f, l) in enumerate(streams):
        assert pos[k] == len(ops), (k, pos[k], len(ops))
    return fill


def gen_k1():
    A = Asm()
    K = "k1_kernel"
    A.raw(f".globl {K}\n.p2align 8\n.type {K},@function\n{K}:")
    S_G, S_J, S_HS, S_B, S_HQ, S_WAVE = 20, 21, 22, 23, 24, 25
    X, KS, VS, WQ, WO, WS = 28, 32, 36, 40, 44, 48
    S_U, S_SLOT, S_KC, S_T0, S_T1, S_KOFF, S_VOFF, S_ROT = 52, 53, 54, 55, 56, 57, 58, 59
    S_CNT, S_C, S_IDX, S_TM = 60, 61, 62, 64
    ST = Stamper(A, 26, S_IDX, S_TM)
    ST.entry()
    A("s_cmp_ge_u32 s2, 256")
    A("s_cbranch_scc1 L1_end")
    A("s_load_dwordx16 s[4:19], s[0:1], 0")
    A("v_lshrrev_b32 v1, 6, v0")
    A(f"s_and_b32 s{S_G}, s2, 7")
    A(f"v_readfirstlane_b32 s{S_WAVE}, v1")
    A(f"s_lshr_b32 s{S_J}, s2, 3")
    A(f"s_and_b32 s{S_HS}, s{S_J}, 3")
    A(f"s_lshr_b32 s{S_B}, s{S_J}, 2")
    A(f"s_lshl_b32 s{S_HQ}, s{S_G}, 2")
    A(f"s_add_u32 s{S_HQ}, s{S_HQ}, s{S_HS}")
    A("v_and_b32 v0, 63, v0")
    ST.init()
    A(f"s_cmp_lg_u32 s{S_WAVE}, 0")
    A("s_cbranch_scc1 L1_compute")

    VX, VW, VK, VV, VO = 2, 6, 10, 14, 44
    T0, T1, T2, T3 = 40, 41, 42, 43
    A(f"v_lshrrev_b32 v{T0}, 4, v0")
    A(f"v_and_b32 v{T1}, 15, v0")
    A(f"v_lshrrev_b32 v{T2}, 3, v0")
    A(f"v_and_b32 v{T3}, 7, v0")
    A(f"v_mul_u32_u24 v{T2}, 1152, v{T2}")
    for m in range(2):
        A(f"v_add_u32 v{VX + m}, {4 * m}, v{T0}")
        A(f"v_xor_b32 v{VX + m}, v{VX + m}, v{T3}")
        A(f"v_lshl_add_u32 v{VX + m}, v{VX + m}, 4, v{T2}")
    A(f"v_add_u32 v{VX + 1}, 8192, v{VX + 1}")
    A(f"v_add_u32 v{VX + 2}, 16384, v{VX + 0}")
    A(f"v_add_u32 v{VX + 3}, 16384, v{VX + 1}")
    A(f"v_lshlrev_b32 v{T2}, 2, v{T0}")
    A(f"v_xor_b32 v{T2}, v{T2}, v{T1}")
    A(f"v_lshlrev_b32 v{T2}, 4, v{T2}")
    A(f"v_lshl_add_u32 v{VW}, v{T0}, 13, v{T2}")
    for m in range(1, 4):
        A(f"v_add_u32 v{VW + m}, {31744 * m}, v{VW}")
    A(f"v_lshl_add_u32 v{VV}, v{T0}, 8, v{T2}")
    for m in range(4):
        A(f"v_add_u32 v{VK + m}, {4 * m}, v{T0}")
        A(f"v_xor_b32 v{VK + m}, v{VK + m}, v{T1}")
        A(f"v_lshlrev_b32 v{VK + m}, 4, v{VK + m}")
        A(f"v_lshl_add_u32 v{VK + m}, v{T0}, 8, v{VK + m}")
    A(f"s_lshl_b32 s{S_KC}, s{S_HS}, 1")
    A(f"s_add_u32 s{S_KC}, s{S_KC}, s{S_B}")
    A(f"s_cmp_ge_u32 s{S_KC}, 9")
    A(f"s_cselect_b32 s{S_T0}, 9, 0")
    A(f"s_sub_u32 s{S_KC}, s{S_KC}, s{S_T0}")
    A(f"s_add_u32 s{S_ROT}, s{S_B}, s{S_G}")
    A(f"s_and_b32 s{S_ROT}, s{S_ROT}, 7")
    A(f"s_lshl_b32 s{S_KOFF}, s{S_ROT}, 14")
    A(f"s_mov_b32 s{S_VOFF}, s{S_KOFF}")
    A(f"s_mov_b32 s{S_U}, 0")
    A(f"s_mov_b32 s{S_SLOT}, 0")
    A.wait(lgkm=0)
    A(f"s_mul_i32 s{S_T0}, s{S_B}, 110592")
    A(f"s_add_u32 s{X}, s4, s{S_T0}")
    A(f"s_addc_u32 s{X + 1}, s5, 0")
    srd(A, X, X, X + 1, 110592)
    A(f"s_lshl_b32 s{S_T0}, s{S_HQ}, 8")
    A(f"s_add_u32 s{WQ}, s10, s{S_T0}")
    A(f"s_addc_u32 s{WQ + 1}, s11, 0")
    A(f"s_sub_u32 s{WQ + 2}, 4718592, s{S_T0}")
    A(f"s_mov_b32 s{WQ + 3}, 0x00020000")
    A(f"s_lshr_b32 s{S_T0}, s{S_HQ}, 1")
    A(f"s_lshl_b32 s{S_T1}, s{S_B}, 4")
    A(f"s_add_u32 s{S_T0}, s{S_T0}, s{S_T1}")
    A(f"s_lshl_b32 s{S_T0}, s{S_T0}, 17")
    A(f"s_add_u32 s{KS}, s6, s{S_T0}")
    A(f"s_addc_u32 s{KS + 1}, s7, 0")
    srd(A, KS, KS, KS + 1, 131072)
    A(f"s_add_u32 s{VS}, s8, s{S_T0}")
    A(f"s_addc_u32 s{VS + 1}, s9, 0")
    srd(A, VS, VS, VS + 1, 131072)
    srd(A, WO, 12, 13, 4718592)
    srd(A, WS, 18, 19, WS_SIZE)
    ST.stamp()

    sizes = [28] * 9 + [16] + [32] * 7 + [16] + [18]
    A.label("L1_ld_loop")
    A(f"s_cmp_lt_u32 s{S_U}, {LOOK}")
    A("s_cbranch_scc1 L1_ld_issue")
    cnts = {}
    for u in range(LOOK, 18 + LOOK):
        t = u - LOOK
        c = sum(sizes[i] for i in range(t + 1, u) if i < len(sizes))
        cnts[u] = min(c, 63)
    runs = []
    for u in sorted(cnts):
        if runs and runs[-1][2] == cnts[u]:
            runs[-1][1] = u
        else:
            runs.append([u, u, cnts[u]])
    for i, (u0, u1, c) in enumerate(runs):
        if i < len(runs) - 1:
            A(f"s_cmp_gt_u32 s{S_U}, {u1}")
            A(f"s_cbranch_scc1 L1_w{i + 1}")
            A.wait(vm=c)
            A("s_branch L1_ld_bar")
            A.label(f"L1_w{i + 1}")
        else:
            A.wait(vm=c)
    A.label("L1_ld_bar")
    ST.stamp()
    A("s_barrier")
    A.label("L1_ld_issue")
    A(f"s_cmp_gt_u32 s{S_U}, 8")
    A("s_cbranch_scc1 L1_ld_kv")
    A(f"s_lshl_b32 s{S_T0}, s{S_KC}, 7")
    A(f"s_lshl_b32 s{S_T1}, s{S_KC}, 19")
    order = [("w", 0), ("x", 0), ("w", 1), ("x", 1), ("w", 2), ("x", 2), ("w", 3)]
    for typ, gi in order:
        if typ == "x":
            A(f"s_add_u32 m0, s{S_SLOT}, {gi * 4096}")
            if gi:
                A(f"s_add_u32 s{S_T0}, s{S_T0}, 36864")
            for m in range(4):
                A(f"buffer_load_dwordx4 v{VX + m}, s[{X}:{X + 3}], s{S_T0} offen offset:{m * 1024}{NT_XW} lds")
        else:
            A(f"s_add_u32 m0, s{S_SLOT}, {12288 + gi * 4096}")
            if gi:
                A(f"s_add_u32 s{S_T1}, s{S_T1}, 131072")
            for m in range(4):
                A(f"buffer_load_dwordx4 v{VW + m}, s[{WQ}:{WQ + 3}], s{S_T1} offen offset:{m * 1024}{NT_XW} lds")
    A(f"s_add_u32 s{S_KC}, s{S_KC}, 1")
    A(f"s_cmp_eq_u32 s{S_KC}, 9")
    A(f"s_cselect_b32 s{S_KC}, 0, s{S_KC}")
    A("s_branch L1_ld_next")
    A.label("L1_ld_kv")
    A(f"s_cmp_gt_u32 s{S_U}, 16")
    A("s_cbranch_scc1 L1_ld_v")
    for gi in range(4):
        A(f"s_add_u32 m0, s{S_SLOT}, {gi * 4096}")
        A(f"s_add_u32 s{S_T0}, s{S_KOFF}, {gi * 4096}")
        for m in range(4):
            A(f"buffer_load_dwordx4 v{VK + m}, s[{KS}:{KS + 3}], s{S_T0} offen offset:{m * 1024}{NT_KV} lds")
    A(f"s_add_u32 s{S_KOFF}, s{S_KOFF}, 16384")
    A(f"s_and_b32 s{S_KOFF}, s{S_KOFF}, 0x1ffff")
    A(f"s_cmp_eq_u32 s{S_U}, 9")
    A("s_cbranch_scc1 L1_ld_next")
    A.label("L1_ld_v")
    A(f"s_cmp_gt_u32 s{S_U}, 17")
    A("s_cbranch_scc1 L1_ld_wo")
    for gi in range(4):
        A(f"s_add_u32 m0, s{S_SLOT}, {16384 + gi * 4096}")
        A(f"s_add_u32 s{S_T0}, s{S_VOFF}, {gi * 4096}")
        for m in range(4):
            A(f"buffer_load_dwordx4 v{VV}, s[{VS}:{VS + 3}], s{S_T0} offen offset:{m * 1024}{NT_KV} lds")
    A(f"s_add_u32 s{S_VOFF}, s{S_VOFF}, 16384")
    A(f"s_and_b32 s{S_VOFF}, s{S_VOFF}, 0x1ffff")
    A("s_branch L1_ld_next")
    A.label("L1_ld_wo")
    A(f"s_cmp_gt_u32 s{S_U}, 18")
    A("s_cbranch_scc1 L1_ld_next")
    WO_SLOT = (18 % NSLOT) * SLOT
    A(f"s_lshl_b32 s{S_T0}, s{S_G}, 4")
    A(f"s_lshr_b32 s{S_T1}, s{S_J}, 1")
    A(f"s_add_u32 s{S_KC}, s{S_T0}, s{S_T1}")
    A(f"s_mul_i32 s{S_T0}, s{S_KC}, {32 * 1152}")
    A(f"s_and_b32 s{S_ROT}, s{S_J}, 1")
    A(f"s_mul_i32 s{S_T1}, s{S_ROT}, 576")
    A(f"s_add_u32 s{S_T0}, s{S_T0}, s{S_T1}")
    A(f"v_lshlrev_b32 v{T1}, 4, v0")
    for i in range(18):
        A(f"v_add_u32 v{T0}, {64 * i}, v0")
        A(f"v_mul_u32_u24 v{T0}, 1821, v{T0}")
        A(f"v_lshrrev_b32 v{T0}, 16, v{T0}")
        A(f"v_mul_u32_u24 v{T0}, 576, v{T0}")
        A(f"v_add_u32 v{VO + i}, v{T0}, v{T1}")
        if i % 4 == 0:
            A(f"s_mov_b32 m0, {WO_SLOT + (i // 4) * 4096}")
            if i:
                A(f"s_add_u32 s{S_T0}, s{S_T0}, 4096")
        A(f"buffer_load_dwordx4 v{VO + i}, s[{WO}:{WO + 3}], s{S_T0} offen offset:{(i % 4) * 1024}{NT_XW} lds")
    A.label("L1_ld_next")
    A(f"s_add_u32 s{S_SLOT}, s{S_SLOT}, {SLOT}")
    A(f"s_cmp_eq_u32 s{S_SLOT}, {SLOT * NSLOT}")
    A(f"s_cselect_b32 s{S_SLOT}, 0, s{S_SLOT}")
    A(f"s_add_u32 s{S_U}, s{S_U}, 1")
    A(f"s_cmp_lt_u32 s{S_U}, {18 + LOOK}")
    A("s_cbranch_scc1 L1_ld_loop")
    A.vm = []
    A(f"v_lshrrev_b32 v{T0}, 5, v0")
    A(f"v_lshlrev_b32 v{T0}, 4, v{T0}")
    A(f"v_bfe_u32 v{T1}, v0, 4, 1")
    A(f"v_lshl_add_u32 v{T0}, v{T1}, 2, v{T0}")
    A(f"v_bfe_u32 v{T1}, v0, 2, 2")
    A(f"v_add_u32 v{T0}, v{T0}, v{T1}")
    A(f"v_mul_u32_u24 v{T0}, 576, v{T0}")
    A(f"v_and_b32 v{T1}, 3, v0")
    A(f"v_lshl_add_u32 v{T0}, v{T1}, 3, v{T0}")
    A(f"v_add_u32 v{T0}, {WO_SLOT}, v{T0}")
    A(f"v_lshlrev_b32 v{T1}, 4, v0")
    A(f"s_mul_i32 s{S_T0}, s{S_ROT}, {18 * 131072}")
    A(f"s_lshl_b32 s{S_T1}, s{S_KC}, 10")
    A(f"s_add_u32 s{S_T0}, s{S_T0}, s{S_T1}")
    A(f"s_add_u32 s{S_T0}, s{S_T0}, {WS_WO}")
    A.wait(vm=0)
    ST.stamp()
    RB = 64
    for cb in range(18):
        A(f"ds_read_b64_tr_b16 {vr(RB + 4 * cb, 2)}, v{T0} offset:{cb * 32}")
        A(f"ds_read_b64_tr_b16 {vr(RB + 4 * cb + 2, 2)}, v{T0} offset:{cb * 32 + 8 * 576}")
    for cb in range(18):
        A(f"buffer_store_dwordx4 {vr(RB + 4 * cb, 4)}, v{T1}, s[{WS}:{WS + 3}], s{S_T0} offen")
        A(f"s_add_u32 s{S_T0}, s{S_T0}, 131072")
    ST.stamp()
    ST.flush(WS, S_WAVE, 0, 0)
    A("s_endpgm")

    A.hist, A.vm, A.lgkm, A.smem_out = [], [], [{("s", i) for i in range(4, 20)}], True
    A.label("L1_compute")
    AD, AV = 2, 10
    BX, BW, BK, BV = 14, 15, 16, 17
    M, MC, AL, THR, T0, T1, T2, T3 = 18, 19, 20, 21, 22, 23, 24, 25
    ONES = 28
    QF, S, P, O, L, QA = 32, 64, 96, 112, 176, 192
    AK, AVF = 0, 64
    S_PEND = 68
    A(f"s_sub_u32 s{S_WAVE}, s{S_WAVE}, 1")
    A(f"v_and_b32 v{T0}, 31, v0")
    A(f"v_lshrrev_b32 v{T1}, 5, v0")
    A(f"v_bfe_u32 v{T2}, v0, 1, 3")
    A(f"v_xor_b32 v{T2}, v{T2}, v{T1}")
    A(f"v_lshlrev_b32 v{T2}, 4, v{T2}")
    A(f"v_lshl_add_u32 v{BX}, v{T0}, 7, v{T2}")
    A(f"s_lshl_b32 s{S_T0}, s{S_WAVE}, 12")
    A(f"v_add_u32 v{BX}, s{S_T0}, v{BX}")
    A(f"v_and_b32 v{T2}, 15, v0")
    A(f"v_xor_b32 v{T2}, v{T2}, v{T1}")
    A(f"v_lshlrev_b32 v{T2}, 4, v{T2}")
    A(f"v_lshl_add_u32 v{BK}, v{T0}, 8, v{T2}")
    A(f"v_bfe_u32 v{T0}, v0, 2, 2")
    A(f"v_mul_u32_u24 v{T0}, 320, v{T0}")
    A(f"v_bfe_u32 v{T2}, v0, 4, 1")
    A(f"v_lshl_add_u32 v{T0}, v{T2}, 5, v{T0}")
    A(f"v_and_b32 v{T2}, 3, v0")
    A(f"v_lshl_add_u32 v{BV}, v{T2}, 3, v{T0}")
    A(f"v_lshl_add_u32 v{BV}, v{T1}, 10, v{BV}")
    A(f"v_and_b32 v{T2}, 1, v0")
    A(f"v_lshl_add_u32 v{BW}, v{T2}, 4, v{T0}")
    A(f"v_bfe_u32 v{T2}, v0, 1, 1")
    A(f"v_lshl_add_u32 v{BW}, v{T2}, 3, v{BW}")
    A(f"v_lshl_add_u32 v{BW}, v{T1}, 11, v{BW}")
    MF = "v_mfma_f32_32x32x16_bf16"
    for i in range(32, 64):
        A(f"v_accvgpr_write_b32 a{AK + i}, 0")
    for i in range(8, 16):
        A(f"v_accvgpr_write_b32 a{AVF + i}, 0")
    for base in [O, O + 16, O + 32, O + 48, L, QA, QA + 16, QA + 32, QA + 48]:
        A(f"{MF} {vr(base, 16)}, {ar(AK + 32, 4)}, {ar(AK + 32, 4)}, 0")
    for i in range(4):
        A(f"v_mov_b32 v{ONES + i}, 0x3f803f80")
    A(f"s_mov_b32 s{S_SLOT}, 0")
    A(f"s_mov_b32 s{S_CNT}, 0")
    A(f"s_mov_b32 s{S_C}, {f32hex(SC)}")
    A(f"s_mov_b64 s[{S_PEND}:{S_PEND + 1}], 0")
    A.wait(lgkm=0)
    srd(A, WS, 18, 19, WS_SIZE)
    if os.environ.get("TOUCH"):
        A(f"v_lshlrev_b32 v{T3}, 18, v0")
        A(f"buffer_load_dword v{T3}, v{T3}, s[{WS}:{WS + 3}], 0 offen offset:3968")
        A.vm = []
    ST.stamp()

    def next_slot():
        return [f"s_add_u32 s{S_SLOT}, s{S_SLOT}, {SLOT}",
                f"s_cmp_eq_u32 s{S_SLOT}, {SLOT * NSLOT}",
                f"s_cselect_b32 s{S_SLOT}, 0, s{S_SLOT}"]

    def addr_ops(base, dst, n, step):
        ops = [f"v_add_u32 v{dst}, s{S_SLOT}, v{base}"]
        for i in range(1, n):
            ops.append(f"v_xor_b32 v{dst + i}, {i * step}, v{dst}")
        return ops

    EXP = os.environ.get("EXP", "")

    def run(mf, fill):
        if EXP:
            for k in fill:
                f = fill[k]
                if "noexp" in EXP:
                    f = [t.replace("v_exp_f32", "v_mov_b32") for t in f]
                if "noread" in EXP:
                    f = [t for t in f if not t.startswith("ds_read")]
                if "nofma" in EXP:
                    f = [t for t in f if not t.startswith("v_fma")]
                if "nocvt" in EXP:
                    f = [t for t in f if not t.startswith("v_cvt")]
                if "nomax" in EXP:
                    f = [t for t in f if not t.startswith("v_max")]
                if "delexp" in EXP:
                    f = [t for t in f if not t.startswith("v_exp")]
                if "fma2mul" in EXP:
                    f = [(t.replace("v_fma_f32", "v_mul_f32").split(", s")[0] + ", v19") if t.startswith("v_fma") else t for t in f]
                fill[k] = f
        over = {k: v for k, v in fill.items() if k >= len(mf)}
        for k in over:
            del fill[k]
        interleave(A, mf, fill)
        for k in sorted(over):
            for t in over[k]:
                A(t)

    def xw_reads(ks):
        r = [f"ds_read_b128 {ar(AVF + 4 * ks, 4)}, v{AD + ks}"]
        for dt in range(4):
            f = AK + 4 * (4 * ks + dt)
            r.append(f"ds_read_b64_tr_b16 {ar(f, 2)}, v{AV + dt} offset:{12288 + ks * 4096}")
            r.append(f"ds_read_b64_tr_b16 {ar(f + 2, 2)}, v{AV + dt} offset:{12288 + ks * 4096 + 1024}")
        return r

    def xw_mf(ks):
        return [f"{MF} {vr(QA + 16 * dt, 16)}, {ar(AK + 4 * (4 * ks + dt), 4)}, {ar(AVF + 4 * ks, 4)}, {vr(QA + 16 * dt, 16)}"
                for dt in range(4)]
    for t in addr_ops(BX, AD, 4, 32) + addr_ops(BW, AV, 4, 64):
        A(t)
    A.raw(".p2align 3")
    A.label("L1_xw")
    A("s_barrier")
    ST.stamp(1)
    r01 = xw_reads(0) + xw_reads(1)
    fill = {-1: r01[:3]}
    spread(fill, r01[3:], 0, 3)
    spread(fill, xw_reads(2), 5, 3)
    fill.setdefault(7, []).append("WAIT9")
    last = spread(fill, xw_reads(3), 8, 3)
    tail = next_slot() + addr_ops(BX, AD, 4, 32) + addr_ops(BW, AV, 4, 64) + [f"s_add_u32 s{S_CNT}, s{S_CNT}, 1", f"s_cmp_lt_u32 s{S_CNT}, 9"]
    spread(fill, tail, last + 1, 4)
    run(xw_mf(2) + xw_mf(3) + xw_mf(0) + xw_mf(1), fill)
    A.wait(lgkm=0)
    A("s_cbranch_scc1 L1_xw")
    A.check_loop("L1_xw")

    def k_reads(kt):
        return [f"ds_read_b128 {ar(AK + 4 * ks, 4)}, v{AD + ks} offset:{kt * 8192}" for ks in range(8)]

    def v_reads(kt, base=AVF, dt_outer=False):
        r = []
        it = [(tp, dt) for tp in range(2) for dt in range(4)]
        if dt_outer:
            it = [(tp, dt) for dt in range(4) for tp in range(2)]
        for tp, dt in it:
            f = base + 4 * (4 * tp + dt)
            o = 16384 + (2 * kt + tp) * 4096
            r.append(f"ds_read_b64_tr_b16 {ar(f, 2)}, v{AV + dt} offset:{o}")
            r.append(f"ds_read_b64_tr_b16 {ar(f + 2, 2)}, v{AV + dt} offset:{o + 2048}")
        return r

    def qk_mf(par):
        return [f"{MF} {vr(S + 16 * par, 16)}, {ar(AK + 4 * ks, 4)}, {vr(QF + 4 * ks, 4)}, "
                + ("0" if ks == 0 else vr(S + 16 * par, 16)) for ks in range(8)]

    def pv(par, tp, dt, base=AVF):
        return f"{MF} {vr(O + 16 * dt, 16)}, {ar(base + 4 * (4 * tp + dt), 4)}, {vr(P + 8 * par + 4 * tp, 4)}, {vr(O + 16 * dt, 16)}"

    def lm(par, tp):
        return f"{MF} {vr(L, 16)}, {vr(ONES, 4)}, {vr(P + 8 * par + 4 * tp, 4)}, {vr(L, 16)}"

    def pv_mf(par):
        return [lm(par, 0)] + [pv(par, 0, dt) for dt in range(4)] + [lm(par, 1)] + [pv(par, 1, dt) for dt in range(4)]

    def max_ops(par):
        b = S + 16 * par
        ops = [f"v_max3_f32 v{T0}, v{b}, v{b + 1}, v{b + 2}", f"v_max3_f32 v{T1}, v{b + 3}, v{b + 4}, v{b + 5}"]
        for n, i in enumerate(range(6, 16, 2)):
            t = T0 if n % 2 == 0 else T1
            ops.append(f"v_max3_f32 v{t}, v{b + i}, v{b + i + 1}, v{t}")
        ops.append(f"v_max_f32 v{T0}, v{T0}, v{T1}")
        return ops

    def sm_ops(par):
        b = S + 16 * par
        f = [f"v_fma_f32 v{b + i}, v{b + i}, s{S_C}, -v{MC}" for i in range(16)]
        e = [f"v_exp_f32 v{b + i}, v{b + i}" for i in range(16)]
        cv = [f"v_cvt_pk_bf16_f32 v{P + 8 * par + i}, v{b + 2 * i}, v{b + 2 * i + 1}" for i in range(8)]
        seq = [f[0], f[1]]
        for i in range(16):
            seq.append(e[i])
            if i + 2 < 16:
                seq.append(f[i + 2])
            if i >= 3 and i % 2 == 1:
                seq.append(cv[(i - 3) // 2])
        seq.append(cv[7])
        return seq

    slow_sites = []

    def checkpoint(name, need_max=True, cmp_done=False):
        if need_max:
            if not cmp_done:
                A(f"v_cmp_gt_f32 vcc, v{T0}, v{THR}")
            A(f"s_or_b64 vcc, vcc, s[{S_PEND}:{S_PEND + 1}]")
            A(f"s_cbranch_vccnz L1_slow_{name}")
        else:
            A(f"s_cmp_lg_u32 s{S_PEND}, 0")
            A(f"s_cbranch_scc1 L1_slow_{name}")
        A.label(f"L1_back_{name}")
        slow_sites.append((name, need_max))

    def set_max(first):
        ops = [f"v_mov_b32 v{T1}, v{T0}",
               f"v_permlane32_swap_b32 v{T0}, v{T1}"]
        if first:
            ops += [f"v_max_f32 v{M}, v{T0}, v{T1}", f"v_mul_f32 v{MC}, s{S_C}, v{M}"]
        else:
            ops += [f"v_max3_f32 v{M}, v{T0}, v{T1}, v{M}",
                    f"v_mov_b32 v{T2}, v{MC}",
                    f"v_mul_f32 v{MC}, s{S_C}, v{M}",
                    f"v_sub_f32 v{T2}, v{T2}, v{MC}",
                    f"v_exp_f32 v{AL}, v{T2}"]
        ops.append(f"v_add_f32 v{THR}, {f32hex(8.0 / SC)}, v{M}")
        return ops

    for t in addr_ops(BK, AD, 8, 32):
        A(t)
    A("s_barrier")
    ST.stamp()
    cv = [f"v_cvt_pk_bf16_f32 v{QF + i}, v{QA + 2 * i}, v{QA + 2 * i + 1}" for i in range(32)]
    mf = [xw_mf(2)[dt] if k == 2 else xw_mf(3)[dt] for dt in range(4) for k in (2, 3)]
    fill = {-1: k_reads(0)}
    spread(fill, cv[:8], 5, 4)
    run(mf, fill)
    for t in cv[8:16]:
        A(t)
    fill = {}
    spread(fill, cv[16:], 0, 5)
    mfq = qk_mf(0)
    kr = k_reads(1)
    for i in range(8):
        fill.setdefault(i, []).append(kr[i])
    run(mfq, fill)
    fill = {}
    spread(fill, next_slot() + addr_ops(BK, AD, 8, 32) + addr_ops(BV, AV, 4, 64), 0, 6)
    spread(fill, max_ops(0) + set_max(True), 3, 6)
    sm0 = sm_ops(0)
    spread(fill, sm0, 6, 6)
    run(qk_mf(1), fill)
    for t in max_ops(1):
        A(t)
    A(f"v_cmp_gt_f32 vcc, v{T0}, v{THR}")
    A(f"s_mov_b32 s{S_CNT}, 0")
    A("s_barrier")
    ST.stamp()
    for t in k_reads(0) + v_reads(0)[:8]:
        A(t)
    A("s_branch L1_kv_entry")
    A.raw(".p2align 3")
    A.label("L1_kv")
    A.lgkm = []
    A("s_barrier")
    ST.stamp()
    sm_e, sm_o = sm_ops(0), sm_ops(1)
    SPLIT = int(os.environ.get("SPLIT", "17"))
    SPLITO = int(os.environ.get("SPLITO", "23"))
    BUD = float(os.environ.get("BUD", "6"))
    cmpop = [f"v_cmp_gt_f32 vcc, v{T0}, v{THR}"]
    vr0, vr1 = v_reads(0), v_reads(1)
    fill = sched(10, [(k_reads(0), -1, 3), (sm_e[SPLIT:], 0, 9), (max_ops(1) + cmpop, 2, 8), (vr0[:8], 5, 9)],
                 BUD, {"head": 2, 9: 3})
    run(pv_mf(1), fill)
    A.label("L1_kv_entry")
    checkpoint("a", cmp_done=True)
    A.wait(lgkm=8)
    fill = sched(8, [(vr0[8:], 0, 4), (sm_o[:SPLITO], 0, 7), (k_reads(1)[:4], 4, 7)], BUD)
    run(qk_mf(0), fill)
    fill = sched(10, [(["WAIT4"] + k_reads(1)[4:], 0, 2), (sm_o[SPLITO:], 0, 9), (max_ops(0) + cmpop, 2, 8), (vr1[:8], 5, 9),
                      (next_slot() + addr_ops(BK, AD, 8, 32)[:6], 3, 9)], BUD, {9: 3})
    run(pv_mf(0), fill)
    checkpoint("b", cmp_done=True)
    A.wait(lgkm=8)
    fill = sched(8, [(vr1[8:] + addr_ops(BV, AV, 4, 64), 0, 6), (sm_e[:SPLIT], 0, 7),
                     (addr_ops(BK, AD, 8, 32)[6:] + [f"s_add_u32 s{S_CNT}, s{S_CNT}, 1", f"s_cmp_lt_u32 s{S_CNT}, 7"], 0, 7)],
                 BUD, {7: 3})
    run(qk_mf(1), fill)
    A.wait(lgkm=0)
    A("s_cbranch_scc1 L1_kv")
    A.check_loop("L1_kv")
    fill = {}
    last = spread(fill, sm_e[SPLIT:], 0, 5)
    spread(fill, max_ops(1), last + 1, 5)
    run(pv_mf(1), fill)
    checkpoint("c")
    for t in sm_o:
        A(t)
    if os.environ.get("TOUCH"):
        A.wait(vm=0)
    A(f"v_bfe_u32 v{T3}, v0, 4, 1")
    A(f"v_lshlrev_b32 v{T3}, 17, v{T3}")
    A(f"v_lshrrev_b32 v{T1}, 5, v0")
    A(f"v_lshl_add_u32 v{T3}, v{T1}, 8, v{T3}")
    A(f"v_and_b32 v{T1}, 15, v0")
    A(f"v_lshl_add_u32 v{T3}, v{T1}, 4, v{T3}")
    A(f"s_mul_i32 s{S_T0}, s{S_B}, 6")
    A(f"s_lshl_b32 s{S_T1}, s{S_WAVE}, 1")
    A(f"s_add_u32 s{S_T0}, s{S_T0}, s{S_T1}")
    A(f"s_lshl_b32 s{S_T0}, s{S_T0}, 17")
    A(f"s_lshl_b32 s{S_T1}, s{S_HQ}, 12")
    A(f"s_add_u32 s{S_T0}, s{S_T0}, s{S_T1}")
    if WS_O:
        A(f"s_add_u32 s{S_T0}, s{S_T0}, {WS_O}")
    A(lm(0, 0))
    A(lm(0, 1))
    A("s_barrier")
    ST.stamp()
    ra, rb = v_reads(0), v_reads(1, AK, True)
    fill = {-1: ra[:12]}
    spread(fill, ra[12:] + rb, 0, 3)
    run([pv(0, tp, dt) for tp in range(2) for dt in range(4)], fill)
    checkpoint("d", False)

    def fin(dt):
        ops = []
        for t in range(2):
            b = O + 16 * dt + 8 * t
            for i in range(8):
                ops.append(f"v_mul_f32 v{b + i}, v{AL}, v{b + i}")
            d = S + 8 * dt + 4 * t
            for i in range(4):
                ops.append(f"v_cvt_pk_bf16_f32 v{d + i}, v{b + 2 * i}, v{b + 2 * i + 1}")
            ops.append(f"buffer_store_dwordx4 {vr(d, 4)}, v{T3}, s[{WS}:{WS + 3}], s{S_T0} offen offset:{dt * 1024 + t * 512}{O_POL}")
        return ops
    mf = [lm(1, 0), lm(1, 1)] + [pv(1, tp, dt, AK) for dt in range(4) for tp in range(2)]
    fill = {8: [f"v_rcp_f32 v{AL}, v{L}"]}
    run(mf, fill)
    if os.environ.get("EARLY11"):
        ST.stamp()
    for dt in range(4):
        for t in fin(dt):
            A(t)
    if not os.environ.get("EARLY11"):
        ST.stamp()
    A(f"s_add_u32 s{S_WAVE}, s{S_WAVE}, 1")
    ST.flush(WS, S_WAVE, 0, 0)
    if STAMPS == 3:
        A("s_cmp_lg_u32 s2, 0")
        A("s_cbranch_scc1 L1_end")
        A(f"s_cmp_lg_u32 s{S_WAVE}, 1")
        A("s_cbranch_scc1 L1_end")
        srd(A, X, 16, 17, 256)
        A(f"buffer_store_dword v26, v27, s[{X}:{X + 3}], 0 offen")
    A.label("L1_end")
    A("s_endpgm")
    for name, need_max in slow_sites:
        A.hist = []
        A.label(f"L1_slow_{name}")
        A("s_nop 15")
        A(f"s_cmp_eq_u32 s{S_PEND}, 0")
        A(f"s_cbranch_scc1 L1_slow2_{name}")
        A(f"v_mul_f32 v{L}, v{AL}, v{L}")
        for i in range(64):
            A(f"v_mul_f32 v{O + i}, v{AL}, v{O + i}")
        A(f"s_mov_b64 s[{S_PEND}:{S_PEND + 1}], 0")
        A.label(f"L1_slow2_{name}")
        if need_max:
            A(f"v_cmp_gt_f32 vcc, v{T0}, v{THR}")
            A("s_nop 4")
            A(f"s_cbranch_vccz L1_slow3_{name}")
            for t in set_max(False):
                A(t)
            A(f"s_mov_b64 s[{S_PEND}:{S_PEND + 1}], -1")
            A.label(f"L1_slow3_{name}")
        A("s_nop 3")
        A(f"s_branch L1_back_{name}")
    desc = dict(name=K, vgpr=256 + 96, accum=256, sgpr=80)
    return A, desc


def gen_k2():
    A = Asm()
    K = "k2_kernel"
    U = K2U
    A.raw(f".globl {K}\n.p2align 8\n.type {K},@function\n{K}:")
    S_G, S_J, S_RG, S_CG, S_WAVE, S_T0, S_T1, S_KO, S_CNT, S_BASE = 20, 21, 22, 23, 24, 25, 26, 27, 36, 37
    WS, OS = 28, 32
    S_IDX, S_TM = 38, 40
    VA = 2
    T0, T1 = 8, 9
    ACC = 12
    FR = 48
    ST = Stamper(A, 250, S_IDX, S_TM)
    ST.entry()
    A("s_cmp_ge_u32 s2, 192")
    A("s_cbranch_scc1 L2_end")
    A("s_load_dwordx4 s[4:7], s[0:1], 48")
    A("s_load_dwordx2 s[8:9], s[0:1], 40")
    A("v_lshrrev_b32 v1, 6, v0")
    A(f"s_and_b32 s{S_G}, s2, 7")
    A(f"v_readfirstlane_b32 s{S_WAVE}, v1")
    A("v_and_b32 v0, 63, v0")
    ST.init()
    A(f"s_lshr_b32 s{S_J}, s2, 3")
    A(f"s_lshr_b32 s{S_T0}, s{S_G}, 1")
    A(f"s_lshl_b32 s{S_T0}, s{S_T0}, 2")
    A(f"s_and_b32 s{S_T1}, s{S_J}, 3")
    A(f"s_add_u32 s{S_RG}, s{S_T0}, s{S_T1}")
    A(f"s_lshl_b32 s{S_KO}, s{S_T1}, 1")
    A(f"s_and_b32 s{S_T0}, s{S_G}, 1")
    A(f"s_mul_i32 s{S_T0}, s{S_T0}, 6")
    A(f"s_lshr_b32 s{S_T1}, s{S_J}, 2")
    A(f"s_add_u32 s{S_CG}, s{S_T0}, s{S_T1}")
    A(f"s_add_u32 s{S_KO}, s{S_KO}, s{S_T1}")
    A(f"s_and_b32 s{S_KO}, s{S_KO}, 7")
    A(f"s_lshl_b32 s{S_KO}, s{S_KO}, 12")
    A(f"s_lshl_b32 s{S_BASE}, s{S_WAVE}, 15")
    A(f"v_lshlrev_b32 v{T0}, 4, v0")
    A(f"s_mul_i32 s{S_T0}, s{S_CG}, {3 * 131072}")
    A(f"s_add_u32 s{S_T0}, s{S_T0}, {WS_WO}")
    A(f"s_add_u32 s{S_T0}, s{S_T0}, s{S_BASE}")
    A(f"v_add_u32 v{VA}, s{S_T0}, v{T0}")
    A(f"v_add_u32 v{VA + 1}, 131072, v{VA}")
    A(f"v_add_u32 v{VA + 2}, 262144, v{VA}")
    A(f"s_mul_i32 s{S_T0}, s{S_RG}, {3 * 131072}")
    if WS_O:
        A(f"s_add_u32 s{S_T0}, s{S_T0}, {WS_O}")
    A(f"s_add_u32 s{S_T0}, s{S_T0}, s{S_BASE}")
    A(f"v_add_u32 v{VA + 3}, s{S_T0}, v{T0}")
    A(f"v_add_u32 v{VA + 4}, 131072, v{VA + 3}")
    A(f"v_add_u32 v{VA + 5}, 262144, v{VA + 3}")
    for i in range(36):
        A(f"v_mov_b32 v{ACC + i}, 0")
    A(f"s_mov_b32 s{S_CNT}, 0")
    A.wait(lgkm=0)
    srd(A, WS, 6, 7, WS_SIZE)
    srd(A, OS, 8, 9, 884736)
    ST.stamp()

    def loads(m):
        return [f"buffer_load_dwordx4 {vr(FR + 24 * m + 4 * i, 4)}, v{VA + i}, s[{WS}:{WS + 3}], s{S_KO} offen offset:{m * 1024}"
                for i in (0, 3, 4, 5, 1, 2)]

    def mfs(m):
        return [f"v_mfma_f32_16x16x32_bf16 {vr(ACC + 4 * (3 * a + b), 4)}, {vr(FR + 24 * m + 4 * a, 4)}, "
                f"{vr(FR + 24 * m + 12 + 4 * b, 4)}, {vr(ACC + 4 * (3 * a + b), 4)}" for a in range(3) for b in range(3)]

    def adv():
        A(f"s_add_u32 s{S_KO}, s{S_KO}, {1024 * U}")
        A(f"s_and_b32 s{S_KO}, s{S_KO}, 0x7fff")
    for m in range(U):
        for t in loads(m):
            A(t)
    adv()
    state0 = [set(x) for x in A.vm]
    A.label("L2_loop")
    for m in range(U):
        for t in mfs(m):
            A(t)
        for t in loads(m):
            A(t)
    adv()
    A(f"s_add_u32 s{S_CNT}, s{S_CNT}, 1")
    A(f"s_cmp_lt_u32 s{S_CNT}, {32 // U - 1}")
    A("s_cbranch_scc1 L2_loop")
    A.check_loop("L2_loop")
    assert [set(x) for x in A.vm] == state0, (A.vm, state0)
    for m in range(U):
        for t in mfs(m):
            A(t)
    ST.stamp()
    A(f"s_mul_i32 s{S_T0}, s{S_WAVE}, 9216")
    A(f"v_add_u32 v{T1}, s{S_T0}, v{T0}")
    for i in range(9):
        A(f"ds_write_b128 v{T1}, {vr(ACC + 4 * i, 4)} offset:{i * 1024}")
    A(f"v_and_b32 v{VA}, 15, v0")
    A(f"v_mul_u32_u24 v{VA}, 1152, v{VA}")
    A(f"v_lshrrev_b32 v{VA + 1}, 4, v0")
    A(f"v_lshl_add_u32 v{VA}, v{VA + 1}, 3, v{VA}")
    A(f"s_mul_i32 s{S_T0}, s{S_RG}, {48 * 1152}")
    A(f"s_mul_i32 s{S_T1}, s{S_CG}, 96")
    A(f"s_add_u32 s{S_BASE}, s{S_T0}, s{S_T1}")
    A(f"s_lshl_b32 s{S_T0}, s{S_WAVE}, 10")
    A(f"v_add_u32 v{T1}, s{S_T0}, v{T0}")
    A.wait(lgkm=0)
    A("s_barrier")
    for rep in range(3):
        if rep == 2:
            A(f"s_cmp_lg_u32 s{S_WAVE}, 0")
            A("s_cbranch_scc1 L2_done")
        for w in range(4):
            A(f"ds_read_b128 {vr(FR + 16 * rep + 4 * w, 4)}, v{T1} offset:{w * 9216 + rep * 4096}")
        A(f"s_add_u32 s{S_T0}, s{S_WAVE}, {4 * rep}")
        A(f"s_mul_i32 s{S_T1}, s{S_T0}, 11")
        A(f"s_lshr_b32 s{S_T1}, s{S_T1}, 5")
        A(f"s_mul_i32 s{S_KO}, s{S_T1}, 3")
        A(f"s_sub_u32 s{S_T0}, s{S_T0}, s{S_KO}")
        A(f"s_mul_i32 s{S_T0}, s{S_T0}, {16 * 1152}")
        A(f"s_lshl_b32 s{S_T1}, s{S_T1}, 5")
        A(f"s_add_u32 s{S_T0}, s{S_T0}, s{S_T1}")
        A(f"s_add_u32 s{S_T0}, s{S_T0}, s{S_BASE}")
        b = FR + 16 * rep
        for r in range(4):
            A(f"v_add_f32 v{b + r}, v{b + r}, v{b + 4 + r}")
            A(f"v_add_f32 v{b + 8 + r}, v{b + 8 + r}, v{b + 12 + r}")
        for r in range(4):
            A(f"v_add_f32 v{b + r}, v{b + r}, v{b + 8 + r}")
        A(f"v_cvt_pk_bf16_f32 v{b}, v{b}, v{b + 1}")
        A(f"v_cvt_pk_bf16_f32 v{b + 1}, v{b + 2}, v{b + 3}")
        A(f"buffer_store_dwordx2 {vr(b, 2)}, v{VA}, s[{OS}:{OS + 3}], s{S_T0} offen")
    A.label("L2_done")
    ST.stamp()
    ST.flush(WS, S_WAVE, 0, 1)
    if STAMPS == 3:
        A("s_cmp_lg_u32 s2, 0")
        A("s_cbranch_scc1 L2_end")
        A(f"s_cmp_lg_u32 s{S_WAVE}, 0")
        A("s_cbranch_scc1 L2_end")
        A(f"s_mov_b32 s{S_T0}, {WS_STAMP + 256}")
        A(f"buffer_load_dword v252, v251, s[{WS}:{WS + 3}], s{S_T0} offen")
        srd(A, OS, 4, 5, 256)
        for i in range(4):
            A(f"v_readlane_b32 s{S_T0}, v250, {i}")
            A("s_nop 4")
            A(f"v_writelane_b32 v252, s{S_T0}, {12 + i}")
        A(f"buffer_store_dword v252, v251, s[{OS}:{OS + 3}], 0 offen")
        if os.environ.get("DIAG"):
            A(f"v_readlane_b32 s{S_T0}, v252, {os.environ['DIAG']}")
            A(f"s_mov_b32 s{S_CNT}, 0")
            A.label("L2_diag")
            A(f"s_memrealtime s[{S_TM}:{S_TM + 1}]")
            A.wait(lgkm=0)
            A(f"s_sub_u32 s{S_T1}, s{S_TM}, s{S_T0}")
            A(f"s_add_u32 s{S_CNT}, s{S_CNT}, 1")
            A(f"s_cmp_gt_u32 s{S_CNT}, 100000")
            A("s_cbranch_scc1 L2_end")
            A(f"s_cmp_lt_u32 s{S_T1}, 10000")
            A("s_cbranch_scc1 L2_diag")
    A.label("L2_end")
    A("s_endpgm")
    nv = max(FR + 24 * U, FR + 48)
    nv = 256 if STAMPS else (nv + 3) // 4 * 4
    desc = dict(name=K, vgpr=nv, accum=nv, sgpr=48)
    return A, desc


def descriptor(d):
    return f""".amdhsa_kernel {d['name']}
  .amdhsa_next_free_vgpr {d['vgpr']}
  .amdhsa_next_free_sgpr {d['sgpr']}
  .amdhsa_accum_offset {d['accum']}
  .amdhsa_group_segment_fixed_size 0
  .amdhsa_kernarg_size 64
  .amdhsa_user_sgpr_count 2
  .amdhsa_user_sgpr_kernarg_segment_ptr 1
  .amdhsa_system_sgpr_workgroup_id_x 1
.end_amdhsa_kernel
"""


def main():
    a1, d1 = gen_k1()
    a2, d2 = gen_k2()
    txt = HEADER
    txt += "; @launch kernel=k1_kernel grid=(256,1,1) block=(256,1,1) lds=163840\n"
    txt += "; @launch kernel=k2_kernel grid=(192,1,1) block=(256,1,1) lds=36864\n"
    for _ in range(int(os.environ.get("EXTRA", "0"))):
        txt += "; @launch kernel=k3_kernel grid=(256,1,1) block=(256,1,1) lds=0\n"
    txt += '.amdgcn_target "amdgcn-amd-amdhsa--gfx950"\n.text\n'
    txt += a1.text() + a2.text()
    if os.environ.get("EXTRA"):
        txt += ".globl k3_kernel\n.p2align 8\n.type k3_kernel,@function\nk3_kernel:\n    s_endpgm\n"
    txt += '.section .rodata,"a"\n.p2align 6\n' + descriptor(d1) + ".p2align 6\n" + descriptor(d2)
    if os.environ.get("EXTRA"):
        txt += ".p2align 6\n" + descriptor(dict(name="k3_kernel", vgpr=8, accum=8, sgpr=16))
    open(OUT, "w").write(txt)
    print("wrote", OUT, "nops k1", a1.nops, "k2", a2.nops)


if __name__ == "__main__":
    main()
```
